```python
import torch

def _softmax(x, axis=-1):
    return torch.softmax(x, dim=axis)
def _gelu(x):
    return torch.nn.functional.gelu(x, approximate="tanh")
def _silu(x):
    return torch.nn.functional.silu(x)
def _sigmoid(x):
    return torch.sigmoid(x)
def _layernorm(x, axis=-1, eps=1e-5):
    m = x.mean(dim=axis, keepdim=True)
    v = x.var(dim=axis, keepdim=True, unbiased=False)
    return (x - m) / torch.sqrt(v + eps)
def _scatter_add(tgt, idx, src, axis=0):
    return tgt.clone().index_add_(axis, idx, src)
def _segment_sum(src, seg, n):
    out = torch.zeros((n,) + src.shape[1:], dtype=src.dtype)
    return out.index_add_(0, seg, src)
def _pad(x, pw):
    flat = tuple(v for pair in reversed(pw) for v in pair)
    return torch.nn.functional.pad(x, flat)

kernel_name = 'gated_mix__linear_attn_block__dense_activation_mish__prompt'

def setup_inputs():

    _w = (lambda a: (lambda t: t.to(torch.bfloat16) if t.is_floating_point() else t)(torch.as_tensor(a)))
    def _A_setup():
        B, S, D = 1, 2048, 576
        return {
            "x": _w((lambda *s: torch.randn(*s, dtype=torch.bfloat16) * 0.05)(B, S, D)),
            "wqkv": _w((lambda *s: torch.randn(*s, dtype=torch.bfloat16) * 0.8)(D, 3 * D)),
            "wo": _w((lambda *s: torch.randn(*s, dtype=torch.bfloat16) * 0.05)(D, D)),
        }
    _A_in = _A_setup()

    def _B_setup():
        B, S, D, F = 1, 2048, 576, 4608
        return {
            "x": _w((lambda *s: torch.randn(*s, dtype=torch.bfloat16) * 0.05)(B, S, D)),
            "w1": _w((lambda *s: torch.randn(*s, dtype=torch.bfloat16) * 12.8)(D, F) * (D ** -0.5)),
            "b1": _w((lambda *s: torch.randn(*s, dtype=torch.bfloat16) * 0.2)(F)),
            "w2": _w((lambda *s: torch.randn(*s, dtype=torch.bfloat16) * 0.05)(F, D) * (F ** -0.5)),
        }
    _B_in = _B_setup()

    return {
        "A_x": _A_in["x"],
        "A_wqkv": _A_in["wqkv"],
        "A_wo": _A_in["wo"],
        "B_x": _B_in["x"],
        "B_w1": _B_in["w1"],
        "B_b1": _B_in["b1"],
        "B_w2": _B_in["w2"],
        "gate_w": _w((lambda *s: torch.randn(*s, dtype=torch.bfloat16) * 0.05)(576) * 16.0),
    }

def reference(A_x, A_wqkv, A_wo, B_x, B_w1, B_b1, B_w2, gate_w):
    def _A_ref(x, wqkv, wo):
        B, S, D = x.shape
        H = 32; Dh = D // H
        qkv = (lambda x, *d: x.permute(*d))((x @ wqkv).reshape(B, S, 3, H, Dh), 2, 0, 3, 1, 4)
        q, k, v = qkv[0], qkv[1], qkv[2]
        phi = lambda t: torch.where(t > 0, t + 1, torch.exp(t)) + 1e-6
        pq, pk = phi(q), phi(k)
        kv = torch.einsum("bhsd,bhse->bhde", pk, v)
        z = torch.einsum("bhsd->bhd", pk)
        num = torch.einsum("bhqd,bhde->bhqe", pq, kv)
        den = torch.einsum("bhqd,bhd->bhq", pq, z)[..., None] + 1e-6
        o = num / den
        return (lambda x, *d: x.permute(*d))(o, 0, 2, 1, 3).reshape(B, S, D) @ wo

    def _B_ref(x, w1, b1, w2):
        h = torch.einsum("bsd,df->bsf", x, w1) + b1
        sp = torch.log1p(torch.exp(-torch.abs(h))) + torch.where(h > 0, h, torch.zeros_like(h))
        act = h * torch.tanh(sp)
        return torch.einsum("bsf,fd->bsd", act, w2)

    x = A_x
    g = _sigmoid((x * gate_w).sum(-1, keepdims=True))
    a = _A_ref(x, A_wqkv, A_wo)
    b = _B_ref(x, B_w1, B_b1, B_w2)
    return g * a + (1 - g) * b
```

```python
import re

class R:
    __slots__ = ('k', 'i', 'n')
    def __init__(s, k, i, n=1): s.k, s.i, s.n = k, i, n
    def __str__(s):
        if s.k in ('vcc', 'm0', 'exec', 'scc'): return s.k
        return f'{s.k}{s.i}' if s.n == 1 else f'{s.k}[{s.i}:{s.i+s.n-1}]'
    def regs(s):
        if s.k in ('vcc', 'm0', 'exec', 'scc'): return {s.k}
        return {f'{s.k}{s.i+j}' for j in range(s.n)}
    def sub(s, o, n=1):
        assert o + n <= s.n, (str(s), o, n)
        return R(s.k, s.i + o, n)
    def __getitem__(s, o): return s.sub(o, 1)
def V(i, n=1): return R('v', i, n)
def A(i, n=1): return R('a', i, n)
def S(i, n=1): return R('s', i, n)
VCC = R('vcc', 0); M0 = R('m0', 0); EXEC = R('exec', 0)

class Neg:
    def __init__(s, r): s.r = r
    def __str__(s): return '-' + str(s.r)
    def regs(s): return s.r.regs()

def regs_of(*ops):
    out = set()
    for o in ops:
        if isinstance(o, (R, Neg)): out |= o.regs()
    return out
def fmt(o):
    if isinstance(o, float):
        return repr(o)
    if isinstance(o, int):
        return str(o) if -16 <= o <= 64 else hex(o & 0xffffffff)
    return str(o)

TRANS = ('v_exp_f32', 'v_rcp_f32', 'v_log_f32', 'v_rsq_f32', 'v_sqrt_f32')

class Ins:
    __slots__ = ('text', 'kind', 'rd', 'wr', 'grp', 'arg', 'srcc', 'wide', 'note')
    def __init__(s, text, kind, rd=(), wr=(), grp=None, arg=None, srcc=(), wide=False):
        s.text, s.kind, s.rd, s.wr, s.grp, s.arg, s.srcc, s.wide = text, kind, set(rd), set(wr), grp, arg, set(srcc), wide
        s.note = None
    @property
    def cost(s):
        return {'mfma16': 8, 'mfma32': 8, 'valu': 4, 'trans': 8, 'dsr': 4, 'dsw': 8, 'vld': 8, 'vst': 12, 'dma': 8,
                'salu': 4, 'wait': 4, 'waitgrp': 4, 'waitreg': 4, 'barrier': 4}.get(s.kind, 4)

def valu(op, dst, *src, mods=''):
    base = op.replace('_e64', '').replace('_e32', '')
    rd = regs_of(*src); wr = regs_of(dst)
    if base.startswith(('v_fmac', 'v_dot2c')): rd |= wr
    if base.startswith('v_permlane') or base == 'v_swap_b32':
        rd |= wr; wr = set(rd)
    kind = 'trans' if base in TRANS else 'valu'
    t = f'{op} ' + ', '.join(fmt(o) for o in (dst,) + src) + (' ' + mods if mods else '')
    return Ins(t, kind, rd, wr)
def salu(op, dst, *src):
    rd = regs_of(*src); wr = regs_of(dst)
    if op.startswith('s_cmp'):
        rd |= wr; wr = set()
    if op.startswith(('s_addk', 's_mulk')): rd |= wr
    t = f'{op} ' + ', '.join(fmt(o) for o in (dst,) + src)
    return Ins(t, 'salu', rd, wr)
def mfma(shape, d, a, b, c):
    op = {16: 'v_mfma_f32_16x16x32_bf16', 32: 'v_mfma_f32_32x32x16_bf16'}[shape]
    assert d.n == (4 if shape == 16 else 16) and a.n == 4 and b.n == 4
    i = Ins(f'{op} {d}, {a}, {b}, {fmt(c)}', f'mfma{shape}', regs_of(a, b, c), regs_of(d), srcc=regs_of(c))
    i.arg = (regs_of(a, b))
    return i
def dsr(op, dst, addr, off=0):
    assert 0 <= off < 65536, off
    return Ins(f'{op} {dst}, {addr}' + (f' offset:{off}' if off else ''), 'dsr', regs_of(addr), regs_of(dst))
def dsw(op, addr, data, off=0):
    assert 0 <= off < 65536, off
    return Ins(f'{op} {addr}, {data}' + (f' offset:{off}' if off else ''), 'dsw', regs_of(addr, data), ())
_W = {1: 'dword', 2: 'dwordx2', 4: 'dwordx4'}
def bld(dst, voff, srd, soff=0, off=0, flags='', grp=None):
    assert 0 <= off < 4096
    t = f'buffer_load_{_W[dst.n]} {dst}, {voff}, {srd}, {fmt(soff)} offen' + (f' offset:{off}' if off else '') + (' ' + flags if flags else '')
    return Ins(t, 'vld', regs_of(voff, srd, soff), regs_of(dst), grp=grp)
def bst(src, voff, srd, soff=0, off=0, flags='', grp=None):
    assert 0 <= off < 4096
    t = f'buffer_store_{_W[src.n]} {src}, {voff}, {srd}, {fmt(soff)} offen' + (f' offset:{off}' if off else '') + (' ' + flags if flags else '')
    i = Ins(t, 'vst', regs_of(src, voff, srd, soff), (), grp=grp, wide=src.n > 2)
    i.arg = regs_of(src)
    return i
def dma(voff, srd, soff=0, off=0, grp=None, flags=''):
    assert 0 <= off < 4096
    t = f'buffer_load_dwordx4 {voff}, {srd}, {fmt(soff)} offen' + (f' offset:{off}' if off else '') + (' ' + flags if flags else '') + ' lds'
    return Ins(t, 'dma', regs_of(voff, srd, soff) | {'m0'}, (), grp=grp)
def sld(dst, base, off, flags=''):
    op = {1: 's_load_dword', 2: 's_load_dwordx2', 4: 's_load_dwordx4', 8: 's_load_dwordx8', 16: 's_load_dwordx16'}[dst.n]
    return Ins(f'{op} {dst}, {base}, {fmt(off) if isinstance(off, R) else hex(off)}' + (' ' + flags if flags else ''), 'smem', regs_of(base, off), regs_of(dst))
def waitgrp(*grps):
    return Ins('', 'waitgrp', arg=set(grps))
def waitreg(*ops):
    return Ins('', 'waitreg', arg=regs_of(*ops))
def wait(grps=(), regs=()):
    return Ins('', 'waitmix', arg=(set(grps), regs_of(*regs)))
def waitlds():
    return Ins('s_waitcnt lgkmcnt(0)', 'wait', arg=('lgkm', 0))
def waitvm0():
    return Ins('s_waitcnt vmcnt(0)', 'wait', arg=('vm', 0))
def barrier(): return Ins('s_barrier', 'barrier')
def raw(text, rd=(), wr=(), kind='raw'):
    return Ins(text, kind, regs_of(*rd), regs_of(*wr))
def label(name): return Ins(name + ':', 'label')
def comment(t): return Ins('; ' + t, 'comment')

def is_valu(i): return i.kind in ('valu', 'trans')
def is_mfma(i): return i.kind in ('mfma16', 'mfma32')
def is_vmem(i): return i.kind in ('vld', 'vst', 'dma')

def need_states(p, c):
    n = 0
    vec = lambda s: {r for r in s if r[0] in 'va' and r != 'vcc'}
    sc = lambda s: {r for r in s if r[0] == 's' or r == 'vcc'}
    if is_valu(p):
        w = vec(p.wr)
        if is_mfma(c) and w & c.rd: n = max(n, 2)
        if p.kind == 'trans' and c.kind == 'valu' and w & c.rd: n = max(n, 1)
        if c.text.startswith('v_permlane') and w & c.rd: n = max(n, 2)
        if c.text.startswith(('v_readfirstlane', 'v_readlane')) and w & c.rd: n = max(n, 1)
        ws = sc(p.wr)
        if ws & c.rd:
            if is_valu(c): n = max(n, 2)
            if is_vmem(c): n = max(n, 5)
            if c.kind in ('salu', 'raw', 'smem'): n = max(n, 2)
    if is_mfma(p):
        big = p.kind == 'mfma32'
        if is_mfma(c):
            if p.wr & c.arg: n = max(n, 12 if big else 8)
            if p.wr & c.srcc and not (p.wr == c.srcc and p.kind == c.kind): n = max(n, 10 if big else 6)
            if p.wr & c.wr and not (p.wr == c.wr and p.kind == c.kind): n = max(n, 10 if big else 6)
        elif c.kind in ('valu', 'trans', 'dsr', 'dsw', 'vld', 'vst', 'dma', 'raw'):
            if p.wr & (c.rd | c.wr): n = max(n, 12 if big else 8)
            if is_valu(c) and p.srcc & c.wr: n = max(n, 7 if big else 3)
    if p.kind == 'salu' and 'm0' in p.wr and c.kind == 'dma': n = max(n, 1)
    if p.kind in ('vst', 'dsw') and (p.wide or p.kind == 'dsw'):
        d = p.arg if p.kind == 'vst' else vec(p.rd)
        if d & c.wr: n = max(n, 2)
    return n

def finalize(prog, stats=None):
    out = []; hist = []
    lg = []; vm = []
    st = dict(nops=0, lazy=0, waits=0)
    def push(text, ins):
        out.append('    ' + text)
        k = 1
        m = re.match(r's_nop (\d+)', text)
        if m: k = int(m.group(1)) + 1
        for h in hist: h[1] += k
        if ins is not None: hist.append([ins, 0])
        while hist and hist[0][1] > 24: hist.pop(0)
    def do_wait(nl, nv):
        parts = []
        if nv is not None:
            nv = min(nv, 63); parts.append(f'vmcnt({nv})'); del vm[:max(0, len(vm) - nv)]
        if nl is not None:
            if any(o.kind == 'smem' for o in lg): nl = 0
            nl = min(nl, 15); parts.append(f'lgkmcnt({nl})'); del lg[:max(0, len(lg) - nl)]
        push('s_waitcnt ' + ' '.join(parts), None); st['waits'] += 1
    def younger(q, pred):
        last = -1
        for k, o in enumerate(q):
            if pred(o): last = k
        return None if last < 0 else len(q) - 1 - last
    for ins in prog:
        if ins.kind in ('label', 'comment'):
            out.append(ins.text); continue
        if ins.kind == 'waitgrp':
            nv = younger(vm, lambda o: o.grp in ins.arg)
            if nv is not None: do_wait(None, nv)
            continue
        if ins.kind == 'waitreg':
            nl = younger(lg, lambda o: o.wr & ins.arg); nv = younger(vm, lambda o: o.wr & ins.arg)
            if nl is not None or nv is not None: do_wait(nl, nv)
            continue
        if ins.kind == 'waitmix':
            g, rg = ins.arg
            nl = younger(lg, lambda o: o.wr & rg); nv = younger(vm, lambda o: o.grp in g or o.wr & rg)
            if nl is not None or nv is not None: do_wait(nl, nv)
            continue
        if ins.kind == 'wait':
            if ins.arg[0] == 'lgkm': do_wait(0, None)
            else: do_wait(None, 0)
            continue
        touch = ins.rd | ins.wr
        nl = younger(lg, lambda o: o.wr & touch); nv = younger(vm, lambda o: o.wr & touch)
        if nl is not None or nv is not None:
            do_wait(nl, nv); st['lazy'] += 1
        need = 0
        for p, d in hist: need = max(need, need_states(p, ins) - d)
        while need > 0:
            k = min(need, 16); push(f's_nop {k-1}', None); need -= k; st['nops'] += 1
        for line in ins.text.split('\n')[:-1]:
            if line.endswith(':'): out.append(line)
            else: push(line, None)
        lastline = ins.text.split('\n')[-1]
        if lastline.endswith(':'):
            out.append(lastline); hist.append([ins, 0])
        else: push(lastline, ins)
        if ins.kind in ('dsr', 'dsw', 'smem'): lg.append(ins)
        if is_vmem(ins):
            vm.append(ins)
            assert len(vm) <= 63, 'vmcnt overflow'
    if stats is not None: stats.update(st)
    return out

class Gap:
    def __init__(s, m): s.m = m; s.shadow = []; s.fixed = []; s.fill = []
    def period(s): return 32 if s.m.kind == 'mfma32' else 16
    def used(s):
        sh = max(0, len([i for i in s.shadow if i.kind != 'stamp']) - 1) * 4
        return 8 + sh + sum(i.cost for i in s.fixed) + sum(i.cost for i in s.fill)
    def free(s): return s.period() - s.used()
    def flat(s): return [s.m] + s.shadow + s.fixed + s.fill

def indep(a, b):
    return not (a.wr & (b.rd | b.wr) or a.rd & b.wr)

def weave(gaps, fillers, lo=0, hi=None, look=6, pace=True):
    hi = len(gaps) if hi is None else hi
    q = list(fillers)
    total = sum(f.cost for f in q)
    cap = sum(max(0, g.free()) for g in gaps[lo:hi])
    done = 0; cum = 0
    for gi in range(lo, hi):
        g = gaps[gi]
        cum += max(0, g.free())
        target = total * cum / cap if cap else total
        while q:
            if pace and total <= cap and done >= target + 8: break
            pick = None
            for k in range(min(look, len(q))):
                f = q[k]
                if all(indep(q[j], f) and not (q[j].kind not in ('valu', 'trans') and f.kind not in ('valu', 'trans')) for j in range(k)) and f.cost <= g.free():
                    pick = k; break
            if pick is None:
                if done + q[0].cost <= target: pick = 0
                else: break
            f = q.pop(pick); g.fill.append(f); done += f.cost
    gaps[hi - 1].fill.extend(q)
    return len(q)

def flatten(gaps):
    out = []
    for g in gaps: out += g.flat()
    return out
```

```python
import sys
from asmlib import *

NAME = 'gated_mix__linear_attn_block__dense_activation_mish__prompt'
LOG2E = 0x3fb8aa3b
WS_ACT = 0
WS_PF = 0x1400000
WS_PA = 0x2000000
WS_KVP = 0x2c00000
WS_KVF = 0x2f00000
WS_G1 = 0x2f20000
WS_FLAG = 0x2f30000
FL_ACT = WS_FLAG
FL_KV1 = WS_FLAG + 768 * 128
FL_KV2 = FL_KV1 + 64 * 128
EP_ACT = FL_KV2 + 4 * 256
EP_KV = EP_ACT + 64 * 128
WS_SIZE = 0x10000000
SPIN = 1 << 17
PFLAGS = ''

SX, SW1, SW2, SB, SWS, SOUT = S(32, 4), S(36, 4), S(40, 4), S(44, 4), S(48, 4), S(52, 4)
sR, sKG, sJ, sW, sLW, sTAG, sT0, sT1, sT2, sT3, sSO, sL2E = [S(56 + i) for i in range(12)]
sOWN, sP1, sP2, sK0, sK1, sK2, sEP, sCNT, sSA, sPFB = [S(68 + i) for i in range(10)]
P_X, P_WQKV, P_WO, P_BX, P_W1, P_B1, P_W2, P_GW, P_OUT, P_DBG, P_WS = [S(8 + 2 * i, 2) for i in range(11)]

def srd(p, dst, ptr, nbytes, shift=0):
    if shift:
        p += [salu('s_sub_u32', dst[0], ptr[0], shift), salu('s_subb_u32', dst[1], ptr[1], 0)]
    else:
        p += [salu('s_mov_b32', dst[0], ptr[0]), salu('s_mov_b32', dst[1], ptr[1])]
    p += [salu('s_mov_b32', dst[2], nbytes + shift), salu('s_mov_b32', dst[3], 0x20000)]

DBG = False
WS_STAMP = 0x3000000
stamps = []
def stamp(name, real=False):
    if not DBG: return []
    k = len(stamps); assert k < 12
    stamps.append(name)
    d = S(78 + 2 * k, 2)
    return [Ins(f's_memrealtime {d}' if real else f's_memtime {d}', 'smem', (), d.regs())]
def stamp_dump():
    if not DBG: return []
    p = [waitlds(), salu('s_lshl_b32', sT0, S(2), 2), salu('s_add_u32', sT0, sT0, sW), salu('s_lshl_b32', sT0, sT0, 6),
         salu('s_add_u32', sT0, sT0, WS_STAMP), valu('v_mov_b32', V(2), sT0)]
    for k in range(len(stamps)):
        p += [valu('v_mov_b32', V(3), S(78 + 2 * k)), bst(V(3), V(2), SWS, off=4 * k)]
    print('stamps', stamps, file=sys.stderr)
    del stamps[2:]
    return p
uid = [0]
def poll_check(val, voff, lo, span, tmp):
    uid[0] += 1; u = uid[0]
    t = f'''v_sub_u32 {tmp}, {val}, {lo}
v_cmp_lt_u32 vcc, {span}, {tmp}
s_cbranch_vccz L_ok{u}
s_mov_b32 {sCNT}, {SPIN}
L_sp{u}:
buffer_load_dword {val}, {voff}, {SWS}, 0 offen sc1
s_waitcnt vmcnt(0)
v_sub_u32 {tmp}, {val}, {lo}
v_cmp_lt_u32 vcc, {span}, {tmp}
s_cbranch_vccz L_ok{u}
s_sub_u32 {sCNT}, {sCNT}, 1
s_cmp_lg_u32 {sCNT}, 0
s_cbranch_scc1 L_sp{u}
L_ok{u}:'''
    return raw(t, rd=(val, voff, lo, SWS), wr=(tmp, val, VCC, sCNT))

def common_prologue():
    p = []
    p += [raw('s_cmp_ge_u32 s2, 256\ns_cbranch_scc1 L_end')]
    p += stamp('rt0', True) + stamp('t0')
    p += [sld(S(8, 16), S(0, 2), 0), sld(S(24, 4), S(0, 2), 64), sld(S(28, 2), S(0, 2), 80)]
    p += [salu('s_and_b32', sT0, S(2), 7), salu('s_lshr_b32', sT1, S(2), 3),
          salu('s_lshr_b32', sKG, sT0, 1), salu('s_and_b32', sT0, sT0, 1), salu('s_lshl_b32', sT0, sT0, 3),
          salu('s_and_b32', sR, sT1, 7), salu('s_add_u32', sR, sR, sT0), salu('s_lshr_b32', sJ, sT1, 3),
          valu('v_lshrrev_b32', V(1), 6, V(0)), valu('v_and_b32', V(0), 63, V(0)),
          valu('v_readfirstlane_b32', sW, V(1)), salu('s_mov_b32', sL2E, LOG2E), waitlds()]
    srd(p, SX, P_X, 2048 * 1152); srd(p, SWS, P_WS, WS_SIZE)
    p += [raw(f's_cmp_eq_u32 {sJ}, 3\ns_cbranch_scc1 L_attn', rd=(sJ,))]
    return p

def x_dma_setup(p, ve, vo, t0, t1):
    L = V(0)
    p += [valu('v_lshrrev_b32', t0, 3, L),
          salu('s_lshl_b32', sT0, sR, 7), salu('s_lshl_b32', sT1, sW, 5), salu('s_add_u32', sT0, sT0, sT1),
          valu('v_add_u32', t0, sT0, t0), valu('v_mul_u32_u24', t0, 1152, t0),
          valu('v_lshrrev_b32', t1, 4, L), valu('v_and_b32', ve, 7, L), valu('v_xor_b32', t1, t1, ve),
          valu('v_lshl_add_u32', ve, t1, 4, t0),
          valu('v_xor_b32', t1, 4, t1), valu('v_lshl_add_u32', vo, t1, 4, t0), valu('v_add_u32', vo, 8 * 1152, vo)]

def x_dma(third, ldsbase, ve, vo, grp):
    p = []
    for c in range(3):
        for o in range(4):
            p += [salu('s_add_u32', M0, sT2, ldsbase + c * 16384 + o * 1024),
                  salu('s_mov_b32', sSO, (o >> 1) * 16 * 1152 + (3 * third + c) * 128),
                  dma(vo if o & 1 else ve, SX, sSO, grp=grp)]
    return p

def mish_ops(H, act, T, Pm, store):
    els = [(rt, r) for rt in range(2) for r in range(16)]
    n = len(els); ops = []
    def h(i): return H[els[i][0]][els[i][1]]
    for s in range(n + 5):
        if s < n: ops.append(valu('v_mul_f32', T[s % 4], sL2E, h(s)))
        i = s - 1
        if 0 <= i < n: ops.append(valu('v_exp_f32', T[i % 4], T[i % 4]))
        i = s - 2
        if 0 <= i < n: ops.append(valu('v_fma_f32', Pm[i % 4], T[i % 4], -0.5, -1.0))
        i = s - 3
        if 0 <= i < n: ops.append(valu('v_fma_f32', Pm[i % 4], T[i % 4], Pm[i % 4], -1.0))
        i = s - 4
        if 0 <= i < n: ops.append(valu('v_rcp_f32', Pm[i % 4], Pm[i % 4]))
        i = s - 5
        if 0 <= i < n:
            ops.append(valu('v_fmac_f32', h(i), h(i), Pm[i % 4]))
            rt, r = els[i]
            if r & 1: ops.append(valu('v_cvt_pk_bf16_f32', act[rt * 8 + r // 2], H[rt][r - 1], H[rt][r]))
            if r == 3 and rt == 1 or i == n - 1:
                q = 0 if i < n - 1 else 1
                for k in range(4): ops.append(valu('v_permlane16_swap_b32', act[q * 8 + k], act[q * 8 + 4 + k]))
                ops += store(2 * q) + store(2 * q + 1)
    return ops

def ffn():
    p = [label('L_ffn')]
    L = V(0)
    vL16, vTR, vD1, vD2, vBI, vFO, vFV, vFD, vT = V(1), V(2, 3), V(5, 3), V(8, 3), V(11), V(12), V(13), V(14), V(15)
    H = [[V(16, 16), V(32, 16)], [V(48, 16), V(64, 16)]]
    ACT = [V(80 + 16 * b, 16) for b in range(6)]
    XOVF = V(176, 32); WF = [V(208 + 4 * i, 4) for i in range(4)]; BIAS = V(224, 16); TMP = V(240, 16)
    vTR2 = [[BIAS[3 * q + k] for k in range(3)] for q in range(4)]
    def X(rt, t):
        i = 2 * t + rt
        return A(4 * i, 4) if i < 64 else XOVF.sub(4 * (i - 64), 4)
    ACC = lambda nt, rt: A((nt * 4 + rt) * 4, 4)
    SLOT = lambda u: 24576 * [0, 1, 4, 5, 2, 3][u % 6]
    BIASOFF = 147456
    t0, t1 = TMP[10], TMP[11]
    xe, xo = TMP[8], TMP[9]
    x_dma_setup(p, xe, xo, t0, t1)
    p += [salu('s_lshl_b32', sT2, sW, 12)]
    p += x_dma(0, 49152, xe, xo, 'X0')
    srd(p, SW1, P_W1, 576 * 9216); srd(p, SW2, P_W2, 4608 * 1152, shift=2048); srd(p, SB, P_B1, 9216)
    p += [salu('s_mul_i32', sT0, sKG, 3), salu('s_add_u32', sT1, sT0, sJ),
          salu('s_mul_i32', sLW, sW, 6144)]
    p += [valu('v_bfe_u32', t0, L, 2, 3), salu('s_mul_i32', sT3, sW, 48), valu('v_add_u32', t0, sT3, t0),
          valu('v_mul_u32_u24', t0, 9216, t0), valu('v_lshrrev_b32', t1, 5, L), valu('v_lshl_add_u32', t0, t1, 6, t0),
          valu('v_and_b32', t1, 3, L), valu('v_lshl_add_u32', t0, t1, 4, t0),
          salu('s_mul_i32', sT3, sT1, 768), valu('v_add_u32', vD1[0], sT3, t0),
          valu('v_add_u32', vD1[1], 73728 - 1024, vD1[0]), valu('v_add_u32', vD1[2], 73728 - 1024, vD1[1])]
    ksrc = [(0, b) for b in range(6)] + [(1, 0), (1, 1), (1, 2), (1, 3), (2, 0), (2, 1), (2, 2), (2, 3), (1, 4), (2, 4), (1, 5), (2, 5)]
    def wdma(u):
        out = []
        for i in range(6):
            hi, lo = divmod(i, 3)
            pre = []
            if lo == 0:
                pre.append(salu('s_add_u32', M0, sLW, SLOT(u) + hi * 3072))
                if u < 18:
                    b, th = divmod(u, 3)
                    pre.append(salu('s_mov_b32', sSO, th * 192 * 9216 + hi * 3 * 73728 + b * 128))
                else:
                    src, b = ksrc[u - 18]
                    pre.append(salu('s_add_u32', sSO, [sK0, sK1, sK2][src], (64 * b + 4 * hi) * 1152))
            out.append((pre, dma((vD1 if u < 18 else vD2)[lo], SW1 if u < 18 else SW2, sSO, off=1024 * lo, grp=f'W{u}')))
        return out
    def wdma_flat(u):
        o = []
        for pre, d in wdma(u): o += pre + [d]
        return o
    p += wdma_flat(0)
    p += [salu('s_lshl_b32', sSA, sW, 8), valu('v_lshl_add_u32', t0, L, 2, sSA), bld(TMP[12], t0, SB, sT3)]
    p += x_dma(1, 98304, xe, xo, 'X1')
    p += wdma_flat(1)
    p += [salu('s_lshl_b32', sEP, sR, 2), salu('s_add_u32', sEP, sEP, sKG),
          salu('s_mul_i32', sOWN, sEP, 3),
          salu('s_lshl_b32', sEP, sEP, 7), salu('s_add_u32', sEP, sEP, EP_ACT), sld(sTAG, P_WS, sEP)]
    p += [salu('s_add_u32', sP1, sJ, 1), salu('s_cmp_eq_u32', sP1, 3), salu('s_cselect_b32', sP1, 0, sP1),
          salu('s_add_u32', sP2, sP1, 1), salu('s_cmp_eq_u32', sP2, 3), salu('s_cselect_b32', sP2, 0, sP2),
          salu('s_mul_i32', sK0, sT1, 384 * 1152),
          salu('s_add_u32', sK1, sT0, sP1), salu('s_mul_i32', sK1, sK1, 384 * 1152),
          salu('s_add_u32', sK2, sT0, sP2), salu('s_mul_i32', sK2, sK2, 384 * 1152)]
    for s_ in (sP1, sP2):
        p += [salu('s_add_u32', s_, s_, sOWN), salu('s_lshl_b32', s_, s_, 2), salu('s_add_u32', s_, s_, sW)]
    p += [salu('s_add_u32', sOWN, sOWN, sJ), salu('s_lshl_b32', sOWN, sOWN, 2), salu('s_add_u32', sOWN, sOWN, sW)]
    p += [valu('v_and_b32', t0, 1, L), valu('v_mov_b32', t1, sP1), valu('v_mov_b32', vFO, sP2),
          valu('v_cmp_eq_u32', VCC, 0, t0), valu('v_cndmask_b32', vFO, vFO, t1, VCC),
          valu('v_lshlrev_b32', vFO, 7, vFO), valu('v_add_u32', vFO, FL_ACT, vFO),
          salu('s_lshl_b32', sT0, sOWN, 7), salu('s_add_u32', sT0, sT0, FL_ACT), valu('v_mov_b32', vT, sT0),
          salu('s_mul_i32', sPFB, sOWN, 12288), salu('s_add_u32', sPFB, sPFB, WS_PF),
          salu('s_mul_i32', sOWN, sOWN, 24576), salu('s_mul_i32', sP1, sP1, 24576), salu('s_mul_i32', sP2, sP2, 24576),
          valu('v_lshlrev_b32', vL16, 4, L)]
    vFS = vT
    p += [valu('v_lshrrev_b32', t0, 5, L), valu('v_lshlrev_b32', t0, 10, t0),
          salu('s_and_b32', sT0, sW, 1), salu('s_lshl_b32', sT1, sT0, 9), valu('v_add_u32', t0, sT1, t0),
          valu('v_bfe_u32', t1, L, 2, 2), valu('v_lshl_add_u32', t0, t1, 6, t0),
          valu('v_bfe_u32', t1, L, 4, 1), valu('v_lshl_add_u32', t0, t1, 5, t0),
          valu('v_and_b32', t1, 3, L), valu('v_lshl_add_u32', vTR[0], t1, 3, t0),
          valu('v_add_u32', vTR[1], 49152, vTR[0]), valu('v_add_u32', vTR[2], 49152, vTR[1])]
    p += [valu('v_lshrrev_b32', t0, 5, L), valu('v_lshlrev_b32', t0, 4, t0), salu('s_lshl_b32', sT1, sT0, 7),
          salu('s_add_u32', sT1, sT1, BIASOFF), valu('v_add_u32', vBI, sT1, t0)]
    p += [valu('v_bfe_u32', t0, L, 3, 2), valu('v_lshrrev_b32', t1, 5, L), valu('v_lshl_add_u32', t0, t1, 4, t0),
          salu('s_lshr_b32', sT1, sW, 1), salu('s_lshl_b32', sT1, sT1, 5), salu('s_lshl_b32', sT3, sT0, 3), salu('s_add_u32', sT1, sT1, sT3),
          valu('v_add_u32', t0, sT1, t0), valu('v_mul_u32_u24', t0, 1152, t0),
          valu('v_lshrrev_b32', t1, 4, L), valu('v_lshlrev_b32', t1, 1, t1), valu('v_and_b32', vD2[0], 7, L), valu('v_xor_b32', t1, t1, vD2[0]),
          valu('v_lshl_add_u32', t0, t1, 4, t0), salu('s_mul_i32', sT1, sJ, 384), salu('s_add_u32', sT1, sT1, 2048),
          valu('v_add_u32', vD2[0], sT1, t0), valu('v_subrev_u32', vD2[1], 896, vD2[0]), valu('v_subrev_u32', vD2[2], 896, vD2[1])]
    p += [valu('v_and_b32', t0, 31, L), salu('s_lshl_b32', sT1, sW, 5), valu('v_add_u32', t0, sT1, t0),
          valu('v_bfe_u32', t1, L, 1, 3), valu('v_lshrrev_b32', TMP[13], 5, L), valu('v_xor_b32', t1, t1, TMP[13]),
          valu('v_lshlrev_b32', t0, 7, t0), valu('v_lshl_add_u32', t0, t1, 4, t0), valu('v_add_u32', TMP[0], 49152, t0)]
    for j in range(1, 4): p += [valu('v_xor_b32', TMP[j], 32 * j, TMP[0])]
    for j in range(4): p += [valu('v_xor_b32', TMP[4 + j], 4096, TMP[j])]
    p += [valu('v_lshlrev_b32', TMP[14], 16, TMP[12]), valu('v_and_b32', TMP[15], 0xffff0000, TMP[12]),
          salu('s_lshl_b32', sT1, sW, 9), salu('s_add_u32', sT1, sT1, BIASOFF), valu('v_lshl_add_u32', t0, L, 3, sT1),
          dsw('ds_write_b64', t0, TMP.sub(14, 2)), waitlds(),
          salu('s_mul_i32', sTAG, sTAG, 1664525), salu('s_add_u32', sTAG, sTAG, 1013904223)]
    def xreads(third):
        o = []
        for i in range(12):
            t = 12 * third + i
            for rt in range(2): o.append(dsr('ds_read_b128', X(rt, t), TMP[4 * rt + (t & 3)], (i >> 2) * 16384))
        return o
    def xregs(third): return [X(rt, 12 * third + i) for i in range(12) for rt in range(2)]
    def xshift(d): return [valu('v_add_u32', TMP[j], d, TMP[j]) for j in range(8)]
    p += [waitgrp('X0'), barrier()] + stamp('X0') + xreads(0) + xshift(49152)
    p += [wait(['W0'], xregs(0)), barrier()]
    p += x_dma(2, 49152, xe, xo, 'X2')

    def frag_reads(n):
        u, i = divmod(n, 12); f = WF[n % 4]; win, rem = divmod(SLOT(u), 49152)
        if u < 18:
            return [dsr('ds_read_b64_tr_b16', f.sub(2 * k, 2), vTR[win], rem + 2048 * i + 256 * k) for k in range(2)]
        return [dsr('ds_read_b64_tr_b16', f.sub(2 * k, 2), vTR2[i & 3][win], rem + 1024 * (i >> 2) + 6144 * k) for k in range(2)]
    def bias_reads(b): return [dsr('ds_read_b128', BIAS.sub(4 * q, 4), vBI, 256 * b + 32 * q) for q in range(4)]
    p += bias_reads(0)
    for n in range(3): p += frag_reads(n)
    PEER = {}
    for k in range(4): PEER[6 + k] = A(192 + 16 * k, 16)
    PEER[10] = XOVF.sub(0, 16); PEER[11] = XOVF.sub(16, 16)
    for k in range(6): PEER[12 + k] = ACT[k]; PEER[k] = ACT[k]
    NF = 36 * 12
    fg = []
    for n in range(NF):
        u, i = divmod(n, 12); f = WF[n % 4]
        if u < 18:
            b, th = divmod(u, 3); t = 12 * th + i
            g = [Gap(mfma(32, H[b & 1][rt], f, X(rt, t), BIAS if t == 0 else H[b & 1][rt])) for rt in range(2)]
        else:
            v = u - 18
            g = [Gap(mfma(16, ACC(i, rt), f, PEER[v].sub(4 * rt, 4), 0 if v == 0 else ACC(i, rt))) for rt in range(4)]
        if n + 3 < NF:
            r = frag_reads(n + 3); g[0].fixed.append(r[0]); g[1].fixed.append(r[1])
        fg.append(g)
    sync_extra = {}
    after_sync = {}
    def put_dma(items, positions):
        for (pre, d), (n, gi) in zip(items, positions):
            fg[n][gi].fixed.insert(0, d)
            flat = [g for m in range(n - 2, n + 1) for g in fg[m]]
            at = flat.index(fg[n][gi])
            w = set().union(*[s_.wr for s_ in pre]) if pre else set()
            back = 0
            while back < len(pre) and not any(i.rd & w for i in flat[at - 1 - back].fixed): back += 1
            for k, s_ in enumerate(pre):
                flat[at - min(back, len(pre) - k)].shadow.append(s_)
    for third, n0 in ((1, 1), (2, 14)):
        fg[n0][0].shadow += [waitgrp(f'X{third}'), barrier()]
        rs = xreads(third); gl = [g for m in range(n0, 12 * (third - 1) + 9) for g in fg[m]][1:-1]
        for k, r in enumerate(rs): gl[k * len(gl) // len(rs)].fixed.append(r)
        sync_extra[third - 1] = ([], xregs(third))
    fg[9][0].fixed += xshift(-49152 & 0xffffffff)[:4]; fg[9][1].fixed += xshift(-49152 & 0xffffffff)[4:]
    put_dma(wdma(2) + wdma(3), [(10 + k // 2, k & 1) for k in range(12)])
    put_dma(wdma(4) + wdma(5) + wdma(6), [(22 + k // 2, k & 1) for k in range(18)])
    for u in range(2, 31):
        put_dma(wdma(u + 5), [(12 * u + 10 + 2 * k, 0 if u < 17 else (2 if 12 * u + 10 + 2 * k >= 216 else 0)) for k in range(6)])
    for b in range(1, 6):
        for k, r in enumerate(bias_reads(b)): fg[36 * (b - 1) + 27 + 2 * k][1].fixed.append(r)
    def flag_store(level): return [valu('v_add_u32', vFD, level, vFD) if level > 1 else valu('v_mov_b32', vFD, sTAG)]
    sync_extra[17] = (['act3'], []); after_sync[17] = [valu('v_mov_b32', vFD, sTAG), bst(vFD, vFS, SWS, flags='sc1')]
    after_sync[18] = [bld(vFV, vFO, SWS, flags='sc1')]
    sync_extra[19] = ([], [vFV])
    bump = raw(f'''s_or_b32 {sT0}, {sJ}, {sW}
s_cmp_lg_u32 {sT0}, 0
s_cbranch_scc1 L_nobump
v_mov_b32 {TMP[9]}, {sEP}
buffer_store_dword {vFD}, {TMP[9]}, {SWS}, 0 offen sc1
s_waitcnt vmcnt(0)
L_nobump:''', rd=(sJ, sW, sEP, vFD, SWS), wr=(sT0, TMP[9]))
    after_sync[19] = [poll_check(vFV, vFO, vFD, 1, TMP[8])]
    sync_extra[24] = (['act5'], []); after_sync[24] = [valu('v_add_u32', vFD, 1, vFD), bst(vFD, vFS, SWS, flags='sc1')]
    after_sync[25] = [bld(vFV, vFO, SWS, flags='sc1')]
    sync_extra[26] = ([], [vFV]); after_sync[26] = [poll_check(vFV, vFO, vFD, 0, TMP[8])]
    def peer_loads(v):
        src, b = ksrc[v]
        return [([salu('s_add_u32', sSA, [None, sP1, sP2][src], b * 4096)] if rt == 0 else [],
                 bld(PEER[v].sub(4 * rt, 4), vL16, SWS, sSA, off=rt * 1024, flags='sc1')) for rt in range(4)]
    it = []
    for v in range(6, 14): it += peer_loads(v)
    put_dma(it, [(12 * 19 + 10 + k, 3) for k in range(32)])
    it = []
    for v in range(14, 18): it += peer_loads(v)
    put_dma(it, [(12 * 26 + 10 + k, 3) for k in range(16)])
    for n in range(NF - 1):
        u, i = divmod(n, 12)
        regs = [WF[(n + 1) % 4]]
        if i == 11 and u + 1 >= 24: regs.append(PEER[u + 1 - 18])
        if i == 11 and u % 3 == 2 and u < 17: regs.append(BIAS)
        if i == 8 and u < 35:
            eg, er = sync_extra.get(u, ([], []))
            fg[n][-1].shadow = [wait([f'W{u+1}'] + eg, regs + er), barrier()] + fg[n][-1].shadow
            fg[n][-1].fixed = after_sync.get(u, []) + fg[n][-1].fixed
        else:
            fg[n][-1].shadow.insert(0, wait([], regs))
    for u in (0, 2, 8, 17, 23, 29): fg[12 * u + (0 if u == 0 else 11)][0].shadow += stamp(f'u{u}')
    gaps = [g for gl in fg for g in gl]
    gi = lambda n: gaps.index(fg[n][0])
    a2 = [valu('v_bfe_u32', TMP[8], L, 2, 3), valu('v_lshlrev_b32', TMP[9], 7, TMP[8]),
          valu('v_lshrrev_b32', TMP[8], 1, TMP[8]), valu('v_lshl_add_u32', TMP[9], TMP[8], 5, TMP[9]),
          valu('v_and_b32', TMP[8], 3, L), valu('v_lshl_add_u32', TMP[9], TMP[8], 3, TMP[9]),
          valu('v_lshrrev_b32', TMP[8], 5, L), valu('v_mul_u32_u24', TMP[8], 3072, TMP[8]), valu('v_add_u32', TMP[9], TMP[8], TMP[9]),
          salu('s_and_b32', sT0, sW, 1), salu('s_mul_i32', sT0, sT0, 12288), valu('v_add_u32', TMP[9], sT0, TMP[9])]
    weave(gaps, a2, gi(26), gi(34))
    a3 = []
    for q in range(4):
        a3.append(valu('v_xor_b32', vTR2[q][0], 32 * q, TMP[9]))
        a3 += [valu('v_add_u32', vTR2[q][k], 49152, vTR2[q][k - 1]) for k in (1, 2)]
    weave(gaps, a3, gi(185), gi(209))
    for b in range(6):
        def store(rt, b=b):
            pre = [salu('s_add_u32', sT3, sOWN, b * 4096)] if rt == 0 else []
            return pre + [bst(ACT[b].sub(4 * rt, 4), vL16, SWS, sT3, off=rt * 1024, flags='sc1', grp=f'act{b}')]
        ops = mish_ops(H[b & 1], ACT[b], TMP.sub(0, 4), TMP.sub(4, 4), store)
        left = weave(gaps, ops, gi(36 * (b + 1) + 1), gi(36 * (b + 2) + (0 if b < 5 else 12)) - 3)
    over = sum(max(0, -g.free()) for g in gaps)
    print('ffn: modelled overflow cycles', over, file=sys.stderr)
    p += flatten(gaps)
    p += stamp('loopend') + [bump]
    p += [waitlds(), barrier(), salu('s_mul_i32', sT0, sW, 24576), valu('v_add_u32', V(2), sT0, vL16),
          salu('s_xor_b32', sT1, sW, 1), salu('s_mul_i32', sT1, sT1, 24576), valu('v_add_u32', V(3), sT1, vL16)]
    for nt in range(12):
        for k in range(2): p.append(dsw('ds_write_b128', V(2), ACC(nt, 2 + k), (nt * 2 + k) * 1024))
    p += [waitlds(), barrier()]
    for nt in range(12):
        for k in range(2): p.append(dsr('ds_read_b128', V(16 + (nt * 2 + k) * 4, 4), V(3), (nt * 2 + k) * 1024))
    for nt in range(12):
        t = V(128 + 8 * (nt & 1), 8); o = V(160 + 4 * nt, 4)
        for r in range(8): p.append(valu('v_accvgpr_read_b32', t[r], A(nt * 16 + r)))
        for r in range(8): p.append(valu('v_add_f32', t[r], t[r], V(16 + nt * 8 + r)))
        for r in range(4): p.append(valu('v_cvt_pk_bf16_f32', o[r], t[2 * r], t[2 * r + 1]))
        if nt % 4 == 0: p.append(salu('s_add_u32', sT3, sPFB, nt * 1024))
        p.append(bst(o, vL16, SWS, sT3, off=(nt % 4) * 1024))
    if DBG: p += [waitvm0()] + stamp('end') + stamp('rt1', True) + stamp_dump()
    p += [raw('s_endpgm')]
    return p

def attn():
    p = [label('L_attn')]
    L = V(0); sHG = sKG
    vL16, vTR, vD, vXR, vFO, vFV, vFD, vFS = V(1), V(2, 2), V(4, 5), V(9, 2), V(11), V(12), V(13), V(14)
    xe, xo = V(240), V(241)
    T = V(242, 14); t0, t1, t2 = T[0], T[1], T[2]
    KV = lambda nt, rt: V(16 + (nt * 2 + rt) * 4, 4)
    QA = lambda nt, rt: V(160 + (nt * 2 + rt) * 4, 4)
    GA = lambda rt: V(232 + 4 * rt, 4)
    X = lambda rt, ks: A((ks * 2 + rt) * 4, 4)
    NW = 8; AH = 6
    WF = [A(144 + 4 * i, 4) for i in range(NW)]
    GW = lambda ks: A(176 + 4 * ks, 4)
    SLOT = lambda u: 18432 * (u % 6)
    XOFF = 110592; EX = 73728; ONES = 159744
    sM = [None, S(4, 2), S(6, 2), S(30, 2)]
    sIMG, sQ, sI, sD, sKVP, sPAB = sOWN, sP1, sP2, sK0, sK1, sK2
    x_dma_setup(p, xe, xo, t0, t1)
    p += [salu('s_lshl_b32', sT2, sW, 12)]
    def xdma(c):
        o = []
        for k in range(4):
            o.append(([salu('s_add_u32', M0, sT2, XOFF + (c % 3) * 16384 + k * 1024), salu('s_mov_b32', sSO, (k >> 1) * 16 * 1152 + c * 128)],
                      dma(xo if k & 1 else xe, SX, sSO, grp=f'X{c}')))
        return o
    flat = lambda it: [i for pre, d in it for i in pre + [d]]
    p += flat(xdma(0))
    srd(p, SW1, P_WQKV, 576 * 3456); srd(p, SW2, P_WO, 576 * 1152); srd(p, SB, P_GW, 1152)
    def dma_offsets(pitch, b0, b1):
        o = [salu('s_and_b32', sT0, sW, 1), salu('s_lshl_b32', sT0, sT0, 8)]
        for i in range(5):
            o += [valu('v_add_u32', t0, sT0, L), valu('v_add_u32', t0, 64 * i, t0) if i else valu('v_mov_b32', t0, t0),
                  valu('v_mul_u32_u24', t1, 3641, t0), valu('v_lshrrev_b32', t1, 16, t1),
                  valu('v_mul_u32_u24', t2, 18, t1), valu('v_sub_u32', t0, t0, t2),
                  valu('v_lshrrev_b32', t2, 1, t1), valu('v_xor_b32', t2, t2, t1), valu('v_and_b32', t2, 1 << b0, t2),
                  valu('v_mul_u32_u24', t2, 3, t2), valu('v_xor_b32', t1, t1, t2),
                  valu('v_mul_u32_u24', t1, pitch, t1), valu('v_lshl_add_u32', vD[i], t0, 4, t1)]
            if 0 < i < 4: o.append(valu('v_subrev_u32', vD[i], 1024 * i, vD[i]))
        return o
    p += dma_offsets(3456, 2, 3)
    p += [salu('s_lshr_b32', sIMG, sW, 1), salu('s_mul_i32', sLW, sIMG, 9216), salu('s_lshl_b32', sT0, sT0, 4), salu('s_add_u32', sLW, sLW, sT0),
          salu('s_mul_i32', sT1, sHG, 288),
          salu('s_mul_i32', sSA, sIMG, 1152), salu('s_add_u32', sSA, sSA, sT1), salu('s_add_u32', sSA, sSA, 1152),
          salu('s_mul_i32', sPFB, sIMG, 32 * 3456), salu('s_add_u32', sPFB, sPFB, sT1)]
    sKVB, sQB, sWO0, sWO1 = sSA, sPFB, sSA, sPFB
    def wdma(u):
        o = []
        for i in range(5):
            pre = []
            if i in (0, 4): pre.append(salu('s_add_u32', M0, sLW, SLOT(u) + 1024 * i))
            if i == 0:
                if u < 18: pre.append(salu('s_add_u32', sSO, sKVB, u * 32 * 3456))
                elif u < 27: pre.append(salu('s_add_u32', sSO, sQB, (u - 18) * 64 * 3456))
                else:
                    cg, ks = divmod(2 * (u - 27), 5)
                    pre.append(salu('s_add_u32', sSO, sWO1 if ks == 4 else sWO0, (ks * 32 * 1152 + cg * 288) & 0xffffffff))
            o.append((pre, dma(vD[i], SW1 if u < 27 else SW2, sSO, off=1024 * (i & 3), grp=f'W{u}')))
        return o
    p += flat(wdma(0)) + flat(wdma(1)) + flat(xdma(1)) + flat(wdma(2)) + flat(wdma(3)) + flat(xdma(2)) + flat(wdma(4))
    p += [salu('s_lshl_b32', sEP, sHG, 7), salu('s_add_u32', sEP, sEP, EP_KV), sld(sTAG, P_WS, sEP),
          valu('v_lshlrev_b32', vL16, 4, L),
          valu('v_bfe_u32', t0, L, 2, 3), valu('v_lshrrev_b32', t1, 5, L), valu('v_lshl_add_u32', t0, t1, 4, t0),
          valu('v_mul_u32_u24', t0, 288, t0), valu('v_and_b32', t1, 3, L), valu('v_lshl_add_u32', vTR[0], t1, 3, t0),
          valu('v_add_u32', vTR[1], 55296, vTR[0]),
          valu('v_and_b32', t0, 15, L), valu('v_lshlrev_b32', t0, 7, t0), valu('v_bfe_u32', t1, L, 1, 3), valu('v_lshrrev_b32', t2, 4, L),
          valu('v_xor_b32', t1, t1, t2), valu('v_lshl_add_u32', t0, t1, 4, t0), salu('s_add_u32', sT0, sT2, XOFF),
          valu('v_add_u32', vXR[0], sT0, t0), valu('v_xor_b32', vXR[1], 64, vXR[0]),
          valu('v_mov_b32', T[4], 0x3f803f80), valu('v_mov_b32', T[5], 0x3f803f80), valu('v_mov_b32', T[6], 0x3f803f80), valu('v_mov_b32', T[7], 0x3f803f80),
          valu('v_add_u32', t0, sT2, vL16), valu('v_lshrrev_b32', t0, 2, t0), valu('v_and_b32', t0, 0xc00, t0), valu('v_add_u32', t0, t0, vL16),
          valu('v_add_u32', t0, ONES, t0), dsw('ds_write_b128', t0, T.sub(4, 4)),
          salu('s_mov_b64', sM[1], 0xffff), salu('s_mov_b32', sM[2][0], -1), salu('s_mov_b32', sM[2][1], 0),
          salu('s_mov_b32', sM[3][0], -1), salu('s_mov_b32', sM[3][1], 0xffff),
          waitlds(), salu('s_mul_i32', sTAG, sTAG, 1664525), salu('s_add_u32', sTAG, sTAG, 1013904223), valu('v_mov_b32', vFD, sTAG)]
    def xreads(c): return [dsr('ds_read_b128', X(rt, 2 * c + k), vXR[k], (c % 3) * 16384 + rt * 2048) for k in range(2) for rt in range(2)]
    def xregs(c): return [X(rt, 2 * c + k) for k in range(2) for rt in range(2)]
    NU = 37; NF = NU * 18
    def finfo(n):
        u, i = divmod(n, 18); img, nt = divmod(i, 9)
        return u, i, img, nt
    def half_only(n):
        u, i, img, nt = finfo(n)
        return u >= 27 and (2 * (u - 27) + img) % 5 == 4
    def frag_reads(n):
        u, i, img, nt = finfo(n); f = WF[n % NW]; win, rem = divmod(SLOT(u), 55296)
        return [dsr('ds_read_b64_tr_b16', f.sub(2 * k, 2), vTR[win], rem + 9216 * img + 32 * nt + 2304 * k) for k in range(1 if half_only(n) else 2)]
    PQ = lambda rt, s_: V(16 + (s_ * 2 + rt) * 4, 4)
    OB = lambda rt, s_: V(160 + (s_ * 2 + rt) * 4, 4)
    WA = lambda cg, nt, rt: V(16 + (cg & 1) * 72 + (nt * 2 + rt) * 4, 4)
    fg = []
    for n in range(NF):
        u, i, img, nt = finfo(n); f = WF[n % NW]
        if u < 18: g = [Gap(mfma(16, KV(i, rt), X(rt, u), f, 0 if u == 0 else KV(i, rt))) for rt in range(2)]
        elif u < 27:
            ks = 2 * (u - 18) + img
            g = [Gap(mfma(16, QA(nt, rt), f, X(rt, ks), 0 if ks == 0 else QA(nt, rt))) for rt in range(2)]
        else:
            cg, ks = divmod(2 * (u - 27) + img, 5)
            g = [Gap(mfma(16, WA(cg, nt, rt), f, OB(rt, ks), 0 if ks == 0 else WA(cg, nt, rt))) for rt in range(2)]
        if n + AH < NF: g[0].fixed += frag_reads(n + AH)
        fg.append(g)
    def put(items, positions):
        for (pre, d), n in zip(items, positions):
            fg[n][1].fixed.insert(0, d)
            for k, s_ in enumerate(pre): fg[n][0 if k == 0 or len(pre) == 1 else 1].shadow.append(s_)
    SP = 18 - AH - 1
    extra = {}; after = {}
    for u in range(0, NU - 5):
        if u + 5 in (22, 23): continue
        put(wdma(u + 5), [18 * u + SP + 1 + k for k in range(5)])
    for c in range(1, 9):
        n0 = 18 * (2 * c - 1)
        fg[n0 + 1][1].shadow.append(waitgrp(f'X{c}'))
        for k, r in enumerate(xreads(c)): fg[n0 + 2 + k][1].fixed.append(r)
    for c in range(3, 9):
        n0 = 18 * (2 * (c - 3))
        fg[n0 + 1][1].shadow.append(waitreg(*xregs(c - 3)))
        put(xdma(c), [n0 + 2 + 2 * k for k in range(4)])
    gl = [([valu('v_and_b32', T[10], 0x30, L)] if ks == 0 else [], bld(GW(ks), T[10], SB, off=64 * ks)) for ks in range(18)]
    put(gl, [18 * (12 + k // 6 * 2) + 1 + k % 6 for k in range(18)])

    def phi(regs, tt):
        o = []; n = len(regs)
        for s_ in range(n + 2):
            if s_ < n: o.append(valu('v_mul_f32', tt[s_ % 4], sL2E, regs[s_]))
            if 0 <= s_ - 1 < n: o += [valu('v_exp_f32_e64', tt[(s_ - 1) % 4], tt[(s_ - 1) % 4], mods='clamp'), valu('v_max_f32', regs[s_ - 1], sT3, regs[s_ - 1])]
            if 0 <= s_ - 2 < n: o.append(valu('v_add_f32', regs[s_ - 2], regs[s_ - 2], tt[(s_ - 2) % 4]))
        return o
    EPS = 0x358637bd
    kv = [comment('kv stage')] + stamp('kv0') + [salu('s_mov_b32', sT3, EPS), barrier(),
          salu('s_lshl_b32', sT0, sW, 10), salu('s_add_u32', sT0, sT0, EX), valu('v_add_u32', T[8], sT0, vL16), valu('v_add_u32', T[9], 36864, T[8])]
    def pack(nt):
        f = V(16 + nt * 8, 4); a = V(16 + nt * 8, 8)
        return [valu('v_cvt_pk_bf16_f32', f[k], a[2 * k], a[2 * k + 1]) for k in range(4)] + \
               [dsw('ds_write_b128', T[8 + nt // 9], f, (nt % 9) * 4096)]
    for nt in range(9, 18): kv += pack(nt)
    for nt in range(9): kv += phi([V(16 + nt * 8 + r) for r in range(8)], T) + pack(nt)
    kv += [salu('s_lshl_b32', sT0, sW, 13), salu('s_add_u32', sT0, sT0, EX), valu('v_add_u32', T[8], sT0, vL16),
           valu('v_add_u32', T[9], EX + 8 * 4096, vL16),
           salu('s_lshl_b32', sT0, sW, 12), salu('s_add_u32', sT0, sT0, EX + 16 * 4096), salu('s_cmp_ge_u32', sW, 2), salu('s_cselect_b32', sT0, ONES, sT0),
           valu('v_add_u32', T[11], sT0, vL16),
           salu('s_lshl_b32', sKVP, sHG, 4), salu('s_add_u32', sT0, sKVP, sR), salu('s_mul_i32', sKVP, sKVP, 36864), salu('s_add_u32', sKVP, sKVP, WS_KVP),
           salu('s_lshl_b32', sT1, sT0, 7), salu('s_mul_i32', sT0, sT0, 36864), salu('s_add_u32', sT0, sT0, WS_KVP),
           salu('s_lshl_b32', sD, sW, 2), salu('s_add_u32', sT1, sT1, sD), salu('s_add_u32', sT1, sT1, FL_KV1), valu('v_mov_b32', vFS, sT1),
           waitlds(), barrier()]
    KF = lambda a, c: V(16 + (a * 4 + c) * 4, 4)
    VF = lambda b, c: V(64 + (b * 4 + c) * 4, 4)
    KD = lambda k: V(160 + 4 * k, 4)
    for c in range(4):
        kv += [dsr('ds_read_b128', KF(0, c), T[8], c * 1024), dsr('ds_read_b128', KF(1, c), T[8], 4096 + c * 1024), dsr('ds_read_b128', KF(2, c), T[9], c * 1024)]
        kv += [dsr('ds_read_b128', VF(b, c), T[8], (8 + b) * 4096 + c * 1024) for b in range(4)] + [dsr('ds_read_b128', VF(4, c), T[11], c * 1024)]
    for c in range(4):
        for a in range(2):
            for d in range(4): kv.append(mfma(16, KD(4 * a + d), KF(a, c), T.sub(4, 4) if d == 3 else VF(a + d, c), 0 if c == 0 else KD(4 * a + d)))
        kv.append(mfma(16, KD(8), KF(2, c), VF(4, c), 0 if c == 0 else KD(8)))
    kv += [barrier()] + flat(wdma(22)) + flat(wdma(23))
    kv += [salu('s_lshl_b32', sT1, sW, 13), salu('s_add_u32', sT1, sT1, sT0), salu('s_add_u32', sD, sT1, 4096),
           salu('s_lshr_b32', sI, sW, 1), salu('s_xor_b32', sI, sI, sW), salu('s_lshl_b32', sI, sI, 10), salu('s_add_u32', sI, sI, sT0), salu('s_add_u32', sI, sI, 32768)]
    for k in range(8): kv.append(bst(KD(k), vL16, SWS, sT1 if k < 4 else sD, off=(k & 3) * 1024, flags='sc1', grp='kvp'))
    kv.append(bst(KD(8), vL16, SWS, sI, flags='sc1', grp='kvp'))
    kv += [valu('v_lshrrev_b32', t0, 2, L), valu('v_lshlrev_b32', t0, 7, t0), valu('v_and_b32', t1, 3, L), valu('v_lshl_add_u32', t0, t1, 2, t0),
           salu('s_lshl_b32', sT0, sHG, 11), salu('s_add_u32', sT0, sT0, FL_KV1), valu('v_add_u32', vFO, sT0, t0),
           salu('s_lshl_b32', sQ, sW, 4), salu('s_add_u32', sQ, sQ, sR),
           salu('s_cmp_eq_u32', sQ, 34), salu('s_cselect_b32', sT0, 19, sQ), salu('s_min_u32', sT0, sT0, 35),
           salu('s_lshr_b32', sI, sT0, 2), salu('s_and_b32', sD, sT0, 3), salu('s_lshl_b32', sT0, sT0, 10), salu('s_add_u32', sKVP, sKVP, sT0)] + stamp('kv1')
    RP = lambda k: V(16 + 4 * k, 4)
    extra[19] = (['kvp'], []); after[19] = [bst(vFD, vFS, SWS, flags='sc1')]
    after[20] = [bld(vFV, vFO, SWS, flags='sc1')]
    extra[21] = ([], [vFV])
    ld = [poll_check(vFV, vFO, vFD, 0, t0)]
    for k in range(16): ld += [salu('s_add_u32', sT0, sKVP, k * 36864), bld(RP(k), vL16, SWS, sT0, flags='sc1')]
    after[21] = ld
    red = []
    for st_ in (8, 4, 2, 1):
        for k in range(st_):
            red += [valu('v_add_f32', RP(k)[r], RP(k)[r], RP(k + st_)[r]) for r in range(4)]
    red += [salu('s_add_u32', sT0, sI, sD), salu('s_lshl_b32', sT0, sT0, 4), salu('s_sub_u32', sT0, sT0, 16),
            valu('v_and_b32', t0, 15, L), valu('v_add_u32', t0, sT0, t0), valu('v_mul_u32_u24', t0, 57, t0), valu('v_lshrrev_b32', t0, 10, t0),
            salu('s_cmp_gt_u32', sQ, 19), salu('s_cselect_b32', sT0, 4, 0), valu('v_and_b32', t1, 3, L), valu('v_add_u32', t1, sT0, t1),
            salu('s_cmp_eq_u32', sD, 3), salu('s_cselect_b64', VCC, -1, 0), valu('v_cndmask_b32', t0, t0, t1, VCC),
            salu('s_lshl_b32', sT0, sI, 4), valu('v_lshrrev_b32', t1, 4, L), valu('v_lshl_add_u32', t1, t1, 2, sT0)]
    for r in range(4):
        red += [valu('v_add_u32', t2, r, t1), valu('v_mul_u32_u24', t2, 57, t2), valu('v_lshrrev_b32', t2, 10, t2),
                valu('v_cmp_eq_u32', VCC, t2, t0), valu('v_cndmask_b32', RP(0)[r], 0, RP(0)[r], VCC)]
    red += [valu('v_cvt_pk_bf16_f32', RP(0)[0], RP(0)[0], RP(0)[1]), valu('v_cvt_pk_bf16_f32', RP(0)[1], RP(0)[2], RP(0)[3]),
            salu('s_lshl_b32', sT0, sHG, 6), salu('s_add_u32', sT1, sT0, sQ), salu('s_lshl_b32', sKVP, sT0, 9), salu('s_add_u32', sKVP, sKVP, WS_KVF),
            salu('s_lshl_b32', sI, sT1, 9), salu('s_add_u32', sI, sI, WS_KVF), valu('v_lshlrev_b32', T[8], 3, L),
            bst(RP(0).sub(0, 2), T[8], SWS, sI, flags='sc1', grp='kvf'),
            salu('s_lshl_b32', sT1, sT1, 2), salu('s_add_u32', sT1, sT1, FL_KV2), valu('v_mov_b32', vFS, sT1),
            salu('s_lshl_b32', sT0, sT0, 2), salu('s_add_u32', sT0, sT0, FL_KV2), valu('v_lshl_add_u32', vFO, L, 2, sT0)]
    extra[23] = ([], [RP(k) for k in range(16)]); after[23] = red
    extra[25] = (['kvf'], []); after[25] = [bst(vFD, vFS, SWS, flags='sc1')]
    after[22] = dma_offsets(1152, 3, 4) + [salu('s_mul_i32', sT1, sHG, 144 * 1152), salu('s_mul_i32', sWO0, sIMG, 32 * 1152), salu('s_add_u32', sWO0, sWO0, sT1),
                salu('s_mul_i32', sWO1, sIMG, (288 - 128 * 1152) & 0xffffffff), salu('s_add_u32', sWO1, sWO1, sT1)]

    NFG = lambda k: V(56 + 4 * k, 4)
    o = [comment('o stage')] + stamp('o0') + [bld(vFV, vFO, SWS, flags='sc1')]
    for ks in range(18):
        for rt in range(2): o.append(mfma(16, GA(rt), GW(ks), X(rt, ks), 0 if ks == 0 else GA(rt)))
    frs = []
    for j in range(9):
        for s_ in range(5):
            ids = [4 * i + (j - i + 1) if abs(j - i) <= 1 and i < 9 else None for i in (2 * s_, 2 * s_ + 1)]
            if any(x is not None for x in ids): frs.append(('n', j, s_, ids))
    frs += [('d', 0, 0, [3, 7]), ('d', 0, 1, [11, 15]), ('d', 0, 2, [19, None]), ('d', 1, 2, [34, 23]), ('d', 1, 3, [27, 31]), ('d', 1, 4, [35, None])]
    assert len(frs) == 23
    for k, fr in enumerate(frs):
        for h, idn in enumerate(fr[3]):
            if idn is None: o += [valu('v_mov_b32', NFG(k)[2 * h], 0), valu('v_mov_b32', NFG(k)[2 * h + 1], 0)]
    o += [poll_check(vFV, vFO, vFD, 0, t0)]
    lds_ = sorted((idn, k, h) for k, fr in enumerate(frs) for h, idn in enumerate(fr[3]) if idn is not None)
    cur = None
    for idn, k, h in lds_:
        if idn // 8 != cur:
            cur = idn // 8; o.append(salu('s_add_u32', sT0, sKVP, cur * 4096))
        o.append(bld(NFG(k).sub(2 * h, 2), T[8], SWS, sT0, off=(idn % 8) * 512, flags='sc1'))
    bump = raw(f"""s_or_b32 {sT0}, {sR}, {sW}
s_cmp_lg_u32 {sT0}, 0
s_cbranch_scc1 L_nobump2
v_mov_b32 {t0}, {sEP}
buffer_store_dword {vFD}, {t0}, {SWS}, 0 offen sc1
s_waitcnt vmcnt(0)
L_nobump2:""", rd=(sR, sW, sEP, vFD, SWS), wr=(sT0, t0))
    o += phi([V(160 + r) for r in range(72)], T)
    for rt in range(2):
        for nt in range(9):
            d = PQ(rt, nt // 2).sub(2 * (nt & 1), 2)
            o += [valu('v_cvt_pk_bf16_f32', d[k], QA(nt, rt)[2 * k], QA(nt, rt)[2 * k + 1]) for k in range(2)]
        o += [valu('v_mov_b32', PQ(rt, 4)[2], 0), valu('v_mov_b32', PQ(rt, 4)[3], 0)]
    for rt in range(2):
        G = GA(rt)
        o += [valu('v_mul_f32', G[1], sL2E, G[0]), valu('v_exp_f32_e64', G[2], Neg(G[1])), valu('v_exp_f32', G[3], G[1]),
              valu('v_add_f32', G[2], 1.0, G[2]), valu('v_add_f32', G[3], 1.0, G[3]), valu('v_rcp_f32', G[2], G[2]), valu('v_rcp_f32', G[3], G[3])]
    o += [salu('s_lshl_b32', sT0, sR, 2), salu('s_add_u32', sT0, sT0, sHG), salu('s_lshl_b32', sT0, sT0, 2), salu('s_add_u32', sT0, sT0, sW),
          salu('s_mul_i32', sPAB, sT0, 36864), salu('s_add_u32', sPAB, sPAB, WS_PA),
          salu('s_lshl_b32', sT0, sT0, 7), salu('s_add_u32', sT0, sT0, WS_G1), valu('v_and_b32', t0, 15, L), valu('v_lshlrev_b32', t0, 2, t0),
          bst(GA(0)[3], t0, SWS, sT0, flags=PFLAGS), bst(GA(1)[3], t0, SWS, sT0, off=64, flags=PFLAGS)]
    DEN = lambda h, rt: A(176 + (h * 2 + rt) * 4, 4)
    OA = QA
    seen = set()
    for k, fr in [x for x in enumerate(frs) if x[1][0] == 'd'] + [x for x in enumerate(frs) if x[1][0] == 'n']:
        for rt in range(2):
            d = DEN(fr[1], rt) if fr[0] == 'd' else OA(fr[1], rt)
            o.append(mfma(16, d, NFG(k), PQ(rt, fr[2]), d if (fr[0], fr[1]) in seen else 0))
        seen.add((fr[0], fr[1]))
    SC = lambda h, rt: V(16 + rt * 8 + h)
    for rt in range(2):
        for h in range(8): o.append(valu('v_accvgpr_read_b32', SC(h, rt), DEN(h // 4, rt)[h % 4]))
    for rt in range(2):
        for h in range(8): o.append(valu('v_add_f32', SC(h, rt), sT3, SC(h, rt)))
    for rt in range(2):
        for h in range(8): o.append(valu('v_rcp_f32', SC(h, rt), SC(h, rt)))
    for rt in range(2):
        for h in range(8): o.append(valu('v_mul_f32', SC(h, rt), GA(rt)[2], SC(h, rt)))
    tk = 0
    OT = lambda rt, s_: V(40 + (s_ * 2 + rt) * 4, 4)
    for j in range(9):
        for rt in range(2):
            for r in range(4):
                G = -(-(2 * j - r) // 4)
                if G <= 0: sc = SC(j, rt)
                elif G >= 4: sc = SC(j - 1, rt)
                else:
                    sc = T[tk % 4]; tk += 1
                    o.append(valu('v_cndmask_b32', sc, SC(j, rt), SC(j - 1, rt), sM[G]))
                o.append(valu('v_mul_f32', OA(j, rt)[r], sc, OA(j, rt)[r]))
            d = OT(rt, j // 2).sub(2 * (j & 1), 2)
            o += [valu('v_cvt_pk_bf16_f32', d[k], OA(j, rt)[2 * k], OA(j, rt)[2 * k + 1]) for k in range(2)]
    for rt in range(2):
        for s_ in range(5):
            for k in range(4): o.append(valu('v_mov_b32', OB(rt, s_)[k], 0 if s_ == 4 and k >= 2 else OT(rt, s_)[k]))
    o += stamp('o1')

    for n in range(NF - 1):
        u, i, img, nt = finfo(n)
        regs = [WF[(n + 1) % NW]]
        if i == 17 and u < 17 and u % 2 == 1: regs += xregs((u + 1) // 2)
        if i == SP and u < NU - 1:
            eg, er = extra.get(u, ([], []))
            fg[n][1].shadow = [wait([f'W{u+1}'] + eg, regs + er), barrier()] + fg[n][1].shadow
            fg[n][1].fixed = after.get(u, []) + fg[n][1].fixed
        else: fg[n][1].shadow.insert(0, wait([], regs))
    gaps = [g for gl_ in fg for g in gl_]
    def out_ops(cg):
        ops = []
        for nt in range(9):
            d = V(200 + 4 * (nt % 8), 4); a = V(16 + (cg & 1) * 72 + nt * 8, 8); g = 9 * cg + nt
            ops += [valu('v_cvt_pk_bf16_f32', d[k], a[2 * k], a[2 * k + 1]) for k in range(4)]
            if nt == 0 or g % 4 == 0: ops.append(salu('s_add_u32', sT1, sPAB, (g // 4) * 4096))
            ops.append(bst(d, vL16, SWS, sT1, off=(g % 4) * 1024, flags=PFLAGS, grp='pa'))
        return ops
    for cg in range(3):
        n0 = 27 * 18 + 45 * (cg + 1)
        weave(gaps, out_ops(cg), 2 * n0 + 4, 2 * (n0 + 45) - 4)
    p += [waitgrp('X0')] + xreads(0) + [waitgrp('W0'), barrier()] + stamp('X0')
    for n in range(AH): p += frag_reads(n)
    p += flatten(gaps[:2 * 18 * 18]) + kv + flatten(gaps[2 * 18 * 18:2 * 27 * 18]) + o + flatten(gaps[2 * 27 * 18:])
    p += stamp('loopend') + out_ops(3) + [bump]
    if DBG: p += [waitvm0()] + stamp('end') + stamp('rt1', True) + stamp_dump()
    p += [raw('s_endpgm')]
    return p

def reduce_kernel():
    L = V(0)
    p = [raw('s_cmp_ge_u32 s2, 576\ns_cbranch_scc1 L_end2')]
    p += [sld(S(24, 4), S(0, 2), 64), sld(S(28, 2), S(0, 2), 80),
          valu('v_lshrrev_b32', V(1), 6, V(0)), valu('v_and_b32', V(0), 63, V(0)), valu('v_readfirstlane_b32', sW, V(1)),
          salu('s_and_b32', sR, S(2), 15), salu('s_lshr_b32', sT0, S(2), 4),
          salu('s_mul_i32', sJ, sT0, 43), salu('s_lshr_b32', sJ, sJ, 9),
          salu('s_mul_i32', sT1, sJ, 12), salu('s_sub_u32', sT1, sT0, sT1),
          waitlds()]
    srd(p, SWS, P_WS, WS_SIZE); srd(p, SOUT, P_OUT, 2048 * 1152)
    p += [valu('v_lshlrev_b32', V(1), 4, L),
          salu('s_mul_i32', sT2, sR, 12), salu('s_add_u32', sT2, sT2, sJ), salu('s_lshl_b32', sT2, sT2, 2), salu('s_add_u32', sT2, sT2, sW),
          salu('s_mul_i32', sT2, sT2, 12288), salu('s_lshl_b32', sT1, sT1, 10), salu('s_add_u32', sT2, sT2, sT1), salu('s_add_u32', sT2, sT2, WS_PF),
          salu('s_lshl_b32', sT3, sR, 4), salu('s_add_u32', sT3, sT3, sW), salu('s_lshl_b32', sSO, sT3, 7), salu('s_add_u32', sSO, sSO, WS_G1),
          salu('s_mul_i32', sT3, sT3, 36864), salu('s_lshl_b32', sT1, sT0, 10), salu('s_add_u32', sT3, sT3, sT1), salu('s_add_u32', sT3, sT3, WS_PA)]
    for k in range(4):
        p += [bld(V(8 + 4 * k, 4), V(1), SWS, sT2), salu('s_add_u32', sT2, sT2, 12 * 12288)]
    for k in range(4):
        p += [bld(V(24 + 4 * k, 4), V(1), SWS, sT3), salu('s_add_u32', sT3, sT3, 4 * 36864)]
    p += [valu('v_and_b32', V(2), 15, L), valu('v_lshlrev_b32', V(3), 2, V(2)), bld(V(4), V(3), SWS, sSO), bld(V(5), V(3), SWS, sSO, off=64),
          salu('s_lshl_b32', sT1, sR, 7), salu('s_lshl_b32', sT2, sW, 5), salu('s_add_u32', sT1, sT1, sT2), valu('v_add_u32', V(2), sT1, V(2)),
          valu('v_mul_u32_u24', V(2), 1152, V(2)), valu('v_lshrrev_b32', V(3), 4, L), valu('v_lshl_add_u32', V(2), V(3), 3, V(2)),
          salu('s_lshl_b32', sT0, sT0, 5), salu('s_add_u32', sT1, sT0, 16 * 1152)]
    for half, base in ((0, 8), (1, 24)):
        for k in range(4):
            for d in range(4):
                src = V(base + 4 * k + d); lo = V(40 + 8 * half + 2 * d); hi = V(41 + 8 * half + 2 * d)
                if k == 0: p += [valu('v_lshlrev_b32', lo, 16, src), valu('v_and_b32', hi, 0xffff0000, src)]
                else: p += [valu('v_lshlrev_b32', V(6), 16, src), valu('v_and_b32', V(7), 0xffff0000, src), valu('v_add_f32', lo, lo, V(6)), valu('v_add_f32', hi, hi, V(7))]
    for e in range(8): p.append(valu('v_fmac_f32', V(48 + e), V(4 + e // 4), V(40 + e)))
    for d in range(4): p.append(valu('v_cvt_pk_bf16_f32', V(8 + d), V(48 + 2 * d), V(49 + 2 * d)))
    p += [bst(V(8, 2), V(2), SOUT, sT0), bst(V(10, 2), V(2), SOUT, sT1), label('L_end2'), raw('s_endpgm')]
    return p

def build(path):
    st = {}
    lines = finalize(common_prologue() + ffn(), st); print('ffn', st, file=sys.stderr)
    lines += finalize(attn(), st); print('attn', st, file=sys.stderr)
    hdr = [l for l in open('cdna_kernels/' + NAME + '.s.ref').read().split('\n') if l.startswith(';') and '@launch' not in l and 'Override' not in l and 'grid=ceil' not in l]
    k1 = 'main_kernel'; k2 = 'reduce_kernel'
    lines2 = finalize(reduce_kernel(), st)
    txt = '\n'.join(hdr) + f'\n; @launch kernel={k1} grid=(256,1,1) block=(256,1,1) lds=163840\n'
    txt += f'; @launch kernel={k2} grid=(576,1,1) block=(256,1,1) lds=0\n'
    txt += '.amdgcn_target "amdgcn-amd-amdhsa--gfx950"\n.text\n'
    txt += f'.globl {k1}\n.p2align 8\n.type {k1},@function\n{k1}:\n' + '\n'.join(lines) + '\nL_end:\n    s_endpgm\n'
    txt += f'.globl {k2}\n.p2align 8\n.type {k2},@function\n{k2}:\n' + '\n'.join(lines2) + '\n'
    txt += '.section .rodata,"a"\n'
    for k, nv, ao in ((k1, 512, 256), (k2, 64, 64)):
        txt += f'''.p2align 6
.amdhsa_kernel {k}
  .amdhsa_next_free_vgpr {nv}
  .amdhsa_next_free_sgpr 102
  .amdhsa_accum_offset {ao}
  .amdhsa_group_segment_fixed_size 0
  .amdhsa_kernarg_size 88
  .amdhsa_user_sgpr_count 2
  .amdhsa_user_sgpr_kernarg_segment_ptr 1
  .amdhsa_system_sgpr_workgroup_id_x 1
.end_amdhsa_kernel
'''
    open(path, 'w').write(txt)

if __name__ == '__main__':
    DBG = 'dbg' in sys.argv[2:]
    build(sys.argv[1] if len(sys.argv) > 1 else 'k.s')
```

```python
import sys
from asmlib import *

NAME = 'gated_mix__linear_attn_block__dense_activation_mish__prompt'
LOG2E = 0x3fb8aa3b
WS_ACT = 0
WS_PF = 0x1400000
WS_PA = 0x2000000
WS_KVP = 0x2c00000
WS_KVF = 0x2f00000
WS_G1 = 0x2f20000
WS_FLAG = 0x2f30000
FL_ACT = WS_FLAG
FL_KV1 = WS_FLAG + 768 * 128
FL_KV2 = FL_KV1 + 64 * 128
EP_ACT = FL_KV2 + 4 * 256
EP_KV = EP_ACT + 64 * 128
WS_SIZE = 0x10000000
OPT = set(sys.argv[2:])
NT = 'nt' if 'nt' in OPT else ''
SPIN = 1 << 17
PFLAGS = ''

SX, SW1, SW2, SB, SWS, SOUT = S(32, 4), S(36, 4), S(40, 4), S(44, 4), S(48, 4), S(52, 4)
sR, sKG, sJ, sW, sLW, sTAG, sT0, sT1, sT2, sT3, sSO, sL2E = [S(56 + i) for i in range(12)]
sOWN, sP1, sP2, sK0, sK1, sK2, sEP, sCNT, sSA, sPFB = [S(68 + i) for i in range(10)]
P_X, P_WQKV, P_WO, P_BX, P_W1, P_B1, P_W2, P_GW, P_OUT, P_DBG, P_WS = [S(8 + 2 * i, 2) for i in range(11)]

def is_attn(wg): return (wg >> 6) == 3

def srd(p, dst, ptr, nbytes, shift=0):
    if shift:
        p += [salu('s_sub_u32', dst[0], ptr[0], shift), salu('s_subb_u32', dst[1], ptr[1], 0)]
    else:
        p += [salu('s_mov_b32', dst[0], ptr[0]), salu('s_mov_b32', dst[1], ptr[1])]
    p += [salu('s_mov_b32', dst[2], nbytes + shift), salu('s_mov_b32', dst[3], 0x20000)]

DBG = False
WS_STAMP = 0x3000000
stamps = []
FINE = False
def stamp(name, real=False, fine=False):
    if not DBG or (fine and not FINE): return []
    i = Ins('', 'stamp', arg=(name, real))
    return [i]
def resolve_stamps(p, role):
    out = []; names = []
    for i in p:
        if i.kind != 'stamp': out.append(i); continue
        k = len(names); assert k < 128; names.append(i.arg[0])
        d = S(80, 2)
        out += [Ins(f's_memrealtime {d}' if i.arg[1] else f's_memtime {d}', 'smem', (), d.regs()), waitlds(),
                raw(f'v_writelane_b32 v{254 + k // 64}, s80, {k % 64}', rd=(d,), wr=(V(254 + k // 64),))]
    if DBG: open(f'stamps_{role}.txt', 'w').write(' '.join(names))
    return out
def stamp_dump():
    if not DBG: return []
    return [salu('s_lshl_b32', sT0, S(2), 2), salu('s_add_u32', sT0, sT0, sW), salu('s_lshl_b32', sT0, sT0, 9),
            salu('s_add_u32', sT0, sT0, WS_STAMP), valu('v_lshlrev_b32', V(2), 2, V(0)),
            bst(V(254), V(2), SWS, sT0), bst(V(255), V(2), SWS, sT0, off=256)]
uid = [0]
def poll_check(val, voff, lo, span, tmp):
    uid[0] += 1; u = uid[0]
    t = f'''v_sub_u32 {tmp}, {val}, {lo}
v_cmp_lt_u32 vcc, {span}, {tmp}
s_cbranch_vccz L_ok{u}
s_mov_b32 {sCNT}, {SPIN}
L_sp{u}:
buffer_load_dword {val}, {voff}, {SWS}, 0 offen sc1
s_waitcnt vmcnt(0)
v_sub_u32 {tmp}, {val}, {lo}
v_cmp_lt_u32 vcc, {span}, {tmp}
s_cbranch_vccz L_ok{u}
s_sub_u32 {sCNT}, {sCNT}, 1
s_cmp_lg_u32 {sCNT}, 0
s_cbranch_scc1 L_sp{u}
L_ok{u}:'''
    return raw(t, rd=(val, voff, lo, SWS), wr=(tmp, val, VCC, sCNT))

def common_prologue():
    p = []
    p += [raw('s_cmp_ge_u32 s2, 256\ns_cbranch_scc1 L_end')]
    p += stamp('rt0', True) + stamp('t0')
    p += [sld(S(8, 16), S(0, 2), 0), sld(S(24, 4), S(0, 2), 64), sld(S(28, 2), S(0, 2), 80)]
    if 'cpf' in OPT:
        p += [raw('s_getpc_b64 s[4:5]\nL_pc:', wr=(S(4, 2),)),
              salu('s_lshr_b32', sT0, S(2), 3), salu('s_and_b32', sT0, sT0, 3), salu('s_lshl_b32', sT0, sT0, 15),
              valu('v_lshl_add_u32', V(2), V(0), 7, sT0), raw('v_min_u32 v2, L_end-L_pc, v2', rd=(V(2),), wr=(V(2),), kind='valu'),
              Ins('global_load_dword v3, v2, s[4:5]' + (' nt' if 'cnt' in OPT else ''), 'vld', {'v2', 's4', 's5'}, {'v3'})]
    p += [salu('s_and_b32', sT0, S(2), 7), salu('s_lshr_b32', sT1, S(2), 3),
          salu('s_lshr_b32', sKG, sT0, 1), salu('s_and_b32', sT0, sT0, 1), salu('s_lshl_b32', sT0, sT0, 3),
          salu('s_and_b32', sR, sT1, 7), salu('s_add_u32', sR, sR, sT0), salu('s_lshr_b32', sJ, sT1, 3),
          valu('v_lshrrev_b32', V(1), 6, V(0)), valu('v_and_b32', V(0), 63, V(0)),
          valu('v_readfirstlane_b32', sW, V(1)), salu('s_mov_b32', sL2E, LOG2E), waitlds()]
    srd(p, SX, P_X, 2048 * 1152); srd(p, SWS, P_WS, WS_SIZE)
    p += [raw(f's_cmp_eq_u32 {sJ}, 3\ns_cbranch_scc1 L_attn', rd=(sJ,))]
    return p

def x_dma_setup(p, ve, vo, t0, t1):
    L = V(0)
    p += [valu('v_lshrrev_b32', t0, 3, L),
          salu('s_lshl_b32', sT0, sR, 7), salu('s_lshl_b32', sT1, sW, 5), salu('s_add_u32', sT0, sT0, sT1),
          valu('v_add_u32', t0, sT0, t0), valu('v_mul_u32_u24', t0, 1152, t0),
          valu('v_lshrrev_b32', t1, 4, L), valu('v_and_b32', ve, 7, L), valu('v_xor_b32', t1, t1, ve),
          valu('v_lshl_add_u32', ve, t1, 4, t0),
          valu('v_xor_b32', t1, 4, t1), valu('v_lshl_add_u32', vo, t1, 4, t0), valu('v_add_u32', vo, 8 * 1152, vo)]

def x_dma(third, ldsbase, ve, vo, grp):
    p = []
    for c in range(3):
        for o in range(4):
            p += [salu('s_add_u32', M0, sT2, ldsbase + c * 16384 + o * 1024),
                  salu('s_mov_b32', sSO, (o >> 1) * 16 * 1152 + (3 * third + c) * 128),
                  dma(vo if o & 1 else ve, SX, sSO, grp=grp, flags=NT)]
    return p

def mish_ops(H, act, T, Pm, store):
    els = [(rt, r) for rt in range(2) for r in range(16)]
    n = len(els); ops = []
    def h(i): return H[els[i][0]][els[i][1]]
    for s in range(n + 5):
        if s < n: ops.append(valu('v_mul_f32', T[s % 4], sL2E, h(s)))
        i = s - 1
        if 0 <= i < n: ops.append(valu('v_exp_f32', T[i % 4], T[i % 4]))
        i = s - 2
        if 0 <= i < n: ops.append(valu('v_fma_f32', Pm[i % 4], T[i % 4], -0.5, -1.0))
        i = s - 3
        if 0 <= i < n: ops.append(valu('v_fma_f32', Pm[i % 4], T[i % 4], Pm[i % 4], -1.0))
        i = s - 4
        if 0 <= i < n: ops.append(valu('v_rcp_f32', Pm[i % 4], Pm[i % 4]))
        i = s - 5
        if 0 <= i < n:
            ops.append(valu('v_fmac_f32', h(i), h(i), Pm[i % 4]))
            rt, r = els[i]
            if r & 1: ops.append(valu('v_cvt_pk_bf16_f32', act[rt * 8 + r // 2], H[rt][r - 1], H[rt][r]))
            if r == 3 and rt == 1 or i == n - 1:
                q = 0 if i < n - 1 else 1
                for k in range(4): ops.append(valu('v_permlane16_swap_b32', act[q * 8 + k], act[q * 8 + 4 + k]))
                ops += store(2 * q) + store(2 * q + 1)
    return ops

def ffn():
    p = [label('L_ffn')]
    L = V(0)
    vL16, vTR, vD1, vD2, vBI, vFO, vFV, vFD, vT = V(1), V(2, 3), V(5, 3), V(8, 3), V(11), V(12), V(13), V(14), V(15)
    H = [[V(16, 16), V(32, 16)], [V(48, 16), V(64, 16)]]
    ACT = [V(80 + 16 * b, 16) for b in range(6)]
    XOVF = V(176, 32); WF = [V(208 + 4 * i, 4) for i in range(4)]; BIAS = V(224, 16); TMP = V(240, 16)
    vTR2 = [[BIAS[3 * q + k] for k in range(3)] for q in range(4)]
    def X(rt, t):
        i = 2 * t + rt
        return A(4 * i, 4) if i < 64 else XOVF.sub(4 * (i - 64), 4)
    ACC = lambda nt, rt: A((nt * 4 + rt) * 4, 4)
    SLOT = lambda u: 24576 * [0, 1, 4, 5, 2, 3][u % 6]
    BIASOFF = 147456
    t0, t1 = TMP[10], TMP[11]
    xe, xo = TMP[8], TMP[9]
    x_dma_setup(p, xe, xo, t0, t1)
    p += [salu('s_lshl_b32', sT2, sW, 12)]
    p += x_dma(0, 49152, xe, xo, 'X0')
    srd(p, SW1, P_W1, 576 * 9216); srd(p, SW2, P_W2, 4608 * 1152, shift=2048); srd(p, SB, P_B1, 9216)
    p += [salu('s_mul_i32', sT0, sKG, 3), salu('s_add_u32', sT1, sT0, sJ),
          salu('s_mul_i32', sLW, sW, 6144)]
    p += [valu('v_bfe_u32', t0, L, 2, 3), salu('s_mul_i32', sT3, sW, 48), valu('v_add_u32', t0, sT3, t0),
          valu('v_mul_u32_u24', t0, 9216, t0), valu('v_lshrrev_b32', t1, 5, L), valu('v_lshl_add_u32', t0, t1, 6, t0),
          valu('v_and_b32', t1, 3, L), valu('v_lshl_add_u32', t0, t1, 4, t0),
          salu('s_mul_i32', sT3, sT1, 768), valu('v_add_u32', vD1[0], sT3, t0),
          valu('v_add_u32', vD1[1], 73728 - 1024, vD1[0]), valu('v_add_u32', vD1[2], 73728 - 1024, vD1[1])]
    ksrc = [(0, b) for b in range(6)] + [(1, 0), (1, 1), (1, 2), (1, 3), (2, 0), (2, 1), (2, 2), (2, 3), (1, 4), (2, 4), (1, 5), (2, 5)]
    def wdma(u):
        out = []
        for i in range(6):
            hi, lo = divmod(i, 3)
            pre = []
            if lo == 0:
                pre.append(salu('s_add_u32', M0, sLW, SLOT(u) + hi * 3072))
                if u < 18:
                    b, th = divmod(u, 3)
                    pre.append(salu('s_mov_b32', sSO, th * 192 * 9216 + hi * 3 * 73728 + b * 128))
                else:
                    src, b = ksrc[u - 18]
                    pre.append(salu('s_add_u32', sSO, [sK0, sK1, sK2][src], (64 * b + 4 * hi) * 1152))
            out.append((pre, dma((vD1 if u < 18 else vD2)[lo], SW1 if u < 18 else SW2, sSO, off=1024 * lo, grp=f'W{u}', flags=NT)))
        return out
    def wdma_flat(u):
        o = []
        for pre, d in wdma(u): o += pre + [d]
        return o
    p += wdma_flat(0)
    p += [salu('s_lshl_b32', sSA, sW, 8), valu('v_lshl_add_u32', t0, L, 2, sSA), bld(H[0][0][0], t0, SB, sT3)]
    p += x_dma(1, 98304, xe, xo, 'X1')
    p += wdma_flat(1)
    p += [salu('s_lshl_b32', sEP, sR, 2), salu('s_add_u32', sEP, sEP, sKG),
          salu('s_mul_i32', sOWN, sEP, 3),
          salu('s_lshl_b32', sEP, sEP, 7), salu('s_add_u32', sEP, sEP, EP_ACT), sld(sTAG, P_WS, sEP)]
    p += [salu('s_add_u32', sP1, sJ, 1), salu('s_cmp_eq_u32', sP1, 3), salu('s_cselect_b32', sP1, 0, sP1),
          salu('s_add_u32', sP2, sP1, 1), salu('s_cmp_eq_u32', sP2, 3), salu('s_cselect_b32', sP2, 0, sP2),
          salu('s_mul_i32', sK0, sT1, 384 * 1152),
          salu('s_add_u32', sK1, sT0, sP1), salu('s_mul_i32', sK1, sK1, 384 * 1152),
          salu('s_add_u32', sK2, sT0, sP2), salu('s_mul_i32', sK2, sK2, 384 * 1152)]
    for s_ in (sP1, sP2):
        p += [salu('s_add_u32', s_, s_, sOWN), salu('s_lshl_b32', s_, s_, 2), salu('s_add_u32', s_, s_, sW)]
    p += [salu('s_add_u32', sOWN, sOWN, sJ), salu('s_lshl_b32', sOWN, sOWN, 2), salu('s_add_u32', sOWN, sOWN, sW)]
    p += [valu('v_and_b32', t0, 1, L), valu('v_mov_b32', t1, sP1), valu('v_mov_b32', vFO, sP2),
          valu('v_cmp_eq_u32', VCC, 0, t0), valu('v_cndmask_b32', vFO, vFO, t1, VCC),
          valu('v_lshlrev_b32', vFO, 7, vFO), valu('v_add_u32', vFO, FL_ACT, vFO),
          salu('s_lshl_b32', sT0, sOWN, 7), salu('s_add_u32', sT0, sT0, FL_ACT), valu('v_mov_b32', vT, sT0),
          salu('s_mul_i32', sPFB, sOWN, 12288), salu('s_add_u32', sPFB, sPFB, WS_PF),
          salu('s_mul_i32', sOWN, sOWN, 24576), salu('s_mul_i32', sP1, sP1, 24576), salu('s_mul_i32', sP2, sP2, 24576),
          valu('v_lshlrev_b32', vL16, 4, L)]
    vFS = vT
    p += [valu('v_lshrrev_b32', t0, 5, L), valu('v_lshlrev_b32', t0, 10, t0),
          salu('s_and_b32', sT0, sW, 1), salu('s_lshl_b32', sT1, sT0, 9), valu('v_add_u32', t0, sT1, t0),
          valu('v_bfe_u32', t1, L, 2, 2), valu('v_lshl_add_u32', t0, t1, 6, t0),
          valu('v_bfe_u32', t1, L, 4, 1), valu('v_lshl_add_u32', t0, t1, 5, t0),
          valu('v_and_b32', t1, 3, L), valu('v_lshl_add_u32', vTR[0], t1, 3, t0),
          valu('v_add_u32', vTR[1], 49152, vTR[0]), valu('v_add_u32', vTR[2], 49152, vTR[1])]
    p += [valu('v_lshrrev_b32', t0, 5, L), valu('v_lshlrev_b32', t0, 4, t0), salu('s_lshl_b32', sT1, sT0, 7),
          salu('s_add_u32', sT1, sT1, BIASOFF), valu('v_add_u32', vBI, sT1, t0)]
    p += [valu('v_bfe_u32', t0, L, 3, 2), valu('v_lshrrev_b32', t1, 5, L), valu('v_lshl_add_u32', t0, t1, 4, t0),
          salu('s_lshr_b32', sT1, sW, 1), salu('s_lshl_b32', sT1, sT1, 5), salu('s_lshl_b32', sT3, sT0, 3), salu('s_add_u32', sT1, sT1, sT3),
          valu('v_add_u32', t0, sT1, t0), valu('v_mul_u32_u24', t0, 1152, t0),
          valu('v_lshrrev_b32', t1, 4, L), valu('v_lshlrev_b32', t1, 1, t1), valu('v_and_b32', vD2[0], 7, L), valu('v_xor_b32', t1, t1, vD2[0]),
          valu('v_lshl_add_u32', t0, t1, 4, t0), salu('s_mul_i32', sT1, sJ, 384), salu('s_add_u32', sT1, sT1, 2048),
          valu('v_add_u32', vD2[0], sT1, t0), valu('v_subrev_u32', vD2[1], 896, vD2[0]), valu('v_subrev_u32', vD2[2], 896, vD2[1])]
    p += [valu('v_and_b32', t0, 31, L), salu('s_lshl_b32', sT1, sW, 5), valu('v_add_u32', t0, sT1, t0),
          valu('v_bfe_u32', t1, L, 1, 3), valu('v_lshrrev_b32', TMP[13], 5, L), valu('v_xor_b32', t1, t1, TMP[13]),
          valu('v_lshlrev_b32', t0, 7, t0), valu('v_lshl_add_u32', t0, t1, 4, t0), valu('v_add_u32', TMP[0], 49152, t0)]
    for j in range(1, 4): p += [valu('v_xor_b32', TMP[j], 32 * j, TMP[0])]
    for j in range(4): p += [valu('v_xor_b32', TMP[4 + j], 4096, TMP[j])]
    p += [valu('v_lshlrev_b32', H[0][0][2], 16, H[0][0][0]), valu('v_and_b32', H[0][0][3], 0xffff0000, H[0][0][0]),
          salu('s_lshl_b32', sT1, sW, 9), salu('s_add_u32', sT1, sT1, BIASOFF), valu('v_lshl_add_u32', t0, L, 3, sT1),
          dsw('ds_write_b64', t0, H[0][0].sub(2, 2)), waitlds(),
          salu('s_mul_i32', sTAG, sTAG, 1664525), salu('s_add_u32', sTAG, sTAG, 1013904223)]
    def xreads(third):
        o = []
        for i in range(12):
            t = 12 * third + i
            for rt in range(2): o.append(dsr('ds_read_b128', X(rt, t), TMP[4 * rt + (t & 3)], (i >> 2) * 16384))
        return o
    def xregs(third): return [X(rt, 12 * third + i) for i in range(12) for rt in range(2)]
    def xshift(d): return [valu('v_add_u32', TMP[j], d, TMP[j]) for j in range(8)]
    p += [waitgrp('X0'), barrier()] + stamp('X0') + xreads(0) + xshift(49152)
    p += [wait(['W0'], xregs(0)), barrier()]
    p += x_dma(2, 49152, xe, xo, 'X2')

    def frag_reads(n):
        u, i = divmod(n, 12); f = WF[n % 4]; win, rem = divmod(SLOT(u), 49152)
        if u < 18:
            return [dsr('ds_read_b64_tr_b16', f.sub(2 * k, 2), vTR[win], rem + 2048 * i + 256 * k) for k in range(2)]
        return [dsr('ds_read_b64_tr_b16', f.sub(2 * k, 2), vTR2[i & 3][win], rem + 1024 * (i >> 2) + 6144 * k) for k in range(2)]
    def bias_reads(b): return [dsr('ds_read_b128', BIAS.sub(4 * q, 4), vBI, 256 * b + 32 * q) for q in range(4)]
    p += bias_reads(0)
    for n in range(3): p += frag_reads(n)
    PEER = {}
    for k in range(4): PEER[6 + k] = A(192 + 16 * k, 16)
    PEER[10] = XOVF.sub(0, 16); PEER[11] = XOVF.sub(16, 16)
    for k in range(6): PEER[12 + k] = ACT[k]; PEER[k] = ACT[k]
    NF = 36 * 12
    fg = []
    for n in range(NF):
        u, i = divmod(n, 12); f = WF[n % 4]
        if u < 18:
            b, th = divmod(u, 3); t = 12 * th + i
            g = [Gap(mfma(32, H[b & 1][rt], f, X(rt, t), BIAS if t == 0 else H[b & 1][rt])) for rt in range(2)]
        else:
            v = u - 18
            g = [Gap(mfma(16, ACC(i, rt), f, PEER[v].sub(4 * rt, 4), 0 if v == 0 else ACC(i, rt))) for rt in range(4)]
        if n + 3 < NF:
            r = frag_reads(n + 3); g[0].fixed.append(r[0]); g[1].fixed.append(r[1])
        fg.append(g)
    sync_extra = {}
    after_sync = {}
    def put_dma(items, positions):
        for (pre, d), (n, gi) in zip(items, positions):
            fg[n][gi].fixed.insert(0, d)
            flat = [g for m in range(n - 2, n + 1) for g in fg[m]]
            at = flat.index(fg[n][gi])
            w = set().union(*[s_.wr for s_ in pre]) if pre else set()
            back = 0
            while back < len(pre) and not any(i.rd & w for i in flat[at - 1 - back].fixed): back += 1
            for k, s_ in enumerate(pre):
                flat[at - min(back, len(pre) - k)].shadow.append(s_)
    for third, n0 in ((1, 1), (2, 14)):
        fg[n0][0].shadow += [waitgrp(f'X{third}'), barrier()]
        rs = xreads(third); gl = [g for m in range(n0, 12 * (third - 1) + 9) for g in fg[m]][1:-1]
        for k, r in enumerate(rs): gl[k * len(gl) // len(rs)].fixed.append(r)
        sync_extra[third - 1] = ([], xregs(third))
    fg[9][0].fixed += xshift(-49152 & 0xffffffff)[:4]; fg[9][1].fixed += xshift(-49152 & 0xffffffff)[4:]
    put_dma(wdma(2) + wdma(3), [(10 + k // 2, k & 1) for k in range(12)])
    put_dma(wdma(4) + wdma(5) + wdma(6), [(22 + k // 2, k & 1) for k in range(18)])
    for u in range(2, 31):
        put_dma(wdma(u + 5), [(12 * u + 10 + 2 * k, 0 if u < 17 else (2 if 12 * u + 10 + 2 * k >= 216 else 0)) for k in range(6)])
    for b in range(1, 6):
        for k, r in enumerate(bias_reads(b)): fg[36 * (b - 1) + 27 + 2 * k][1].fixed.append(r)
    def flag_store(level): return [valu('v_add_u32', vFD, level, vFD) if level > 1 else valu('v_mov_b32', vFD, sTAG)]
    sync_extra[17] = (['act3'], []); after_sync[17] = [valu('v_mov_b32', vFD, sTAG), bst(vFD, vFS, SWS, flags='sc1')]
    after_sync[18] = [bld(vFV, vFO, SWS, flags='sc1')]
    sync_extra[19] = ([], [vFV])
    bump = raw(f'''s_or_b32 {sT0}, {sJ}, {sW}
s_cmp_lg_u32 {sT0}, 0
s_cbranch_scc1 L_nobump
v_mov_b32 {TMP[9]}, {sEP}
buffer_store_dword {vFD}, {TMP[9]}, {SWS}, 0 offen sc1
s_waitcnt vmcnt(0)
L_nobump:''', rd=(sJ, sW, sEP, vFD, SWS), wr=(sT0, TMP[9]))
    after_sync[19] = [poll_check(vFV, vFO, vFD, 1, TMP[8])]
    sync_extra[24] = (['act5'], []); after_sync[24] = [valu('v_add_u32', vFD, 1, vFD), bst(vFD, vFS, SWS, flags='sc1')]
    after_sync[25] = [bld(vFV, vFO, SWS, flags='sc1')]
    sync_extra[26] = ([], [vFV]); after_sync[26] = [poll_check(vFV, vFO, vFD, 0, TMP[8])]
    def peer_loads(v):
        src, b = ksrc[v]
        return [([salu('s_add_u32', sSA, [None, sP1, sP2][src], b * 4096)] if rt == 0 else [],
                 bld(PEER[v].sub(4 * rt, 4), vL16, SWS, sSA, off=rt * 1024, flags='sc1')) for rt in range(4)]
    it = []
    for v in range(6, 14): it += peer_loads(v)
    put_dma(it, [(12 * 19 + 10 + k, 3) for k in range(32)])
    it = []
    for v in range(14, 18): it += peer_loads(v)
    put_dma(it, [(12 * 26 + 10 + k, 3) for k in range(16)])
    for n in range(NF - 1):
        u, i = divmod(n, 12)
        regs = [WF[(n + 1) % 4]]
        if i == 11 and u + 1 >= 24: regs.append(PEER[u + 1 - 18])
        if i == 11 and u % 3 == 2 and u < 17: regs.append(BIAS)
        if i == 8 and u < 35:
            eg, er = sync_extra.get(u, ([], []))
            fg[n][-1].shadow = stamp(f'a{u}', fine=True) + [wait([f'W{u+1}'] + eg, regs + er), barrier()] + stamp(f'b{u}', fine=True) + fg[n][-1].shadow
            fg[n][-1].fixed = after_sync.get(u, []) + fg[n][-1].fixed
        else:
            fg[n][-1].shadow.insert(0, wait([], regs))
    for u in (0, 2, 8, 17, 23, 29): fg[12 * u + (0 if u == 0 else 11)][0].shadow += stamp(f'u{u}')
    gaps = [g for gl in fg for g in gl]
    gi = lambda n: gaps.index(fg[n][0])
    a2 = [valu('v_bfe_u32', TMP[8], L, 2, 3), valu('v_lshlrev_b32', TMP[9], 7, TMP[8]),
          valu('v_lshrrev_b32', TMP[8], 1, TMP[8]), valu('v_lshl_add_u32', TMP[9], TMP[8], 5, TMP[9]),
          valu('v_and_b32', TMP[8], 3, L), valu('v_lshl_add_u32', TMP[9], TMP[8], 3, TMP[9]),
          valu('v_lshrrev_b32', TMP[8], 5, L), valu('v_mul_u32_u24', TMP[8], 3072, TMP[8]), valu('v_add_u32', TMP[9], TMP[8], TMP[9]),
          salu('s_and_b32', sT0, sW, 1), salu('s_mul_i32', sT0, sT0, 12288), valu('v_add_u32', TMP[9], sT0, TMP[9])]
    weave(gaps, a2, gi(26), gi(34))
    a3 = []
    for q in range(4):
        a3.append(valu('v_xor_b32', vTR2[q][0], 32 * q, TMP[9]))
        a3 += [valu('v_add_u32', vTR2[q][k], 49152, vTR2[q][k - 1]) for k in (1, 2)]
    weave(gaps, a3, gi(185), gi(209))
    for b in range(6):
        def store(rt, b=b):
            pre = [salu('s_add_u32', sT3, sOWN, b * 4096)] if rt == 0 else []
            return pre + [bst(ACT[b].sub(4 * rt, 4), vL16, SWS, sT3, off=rt * 1024, flags='sc1', grp=f'act{b}')]
        ops = mish_ops(H[b & 1], ACT[b], TMP.sub(0, 4), TMP.sub(4, 4), store)
        left = weave(gaps, ops, gi(36 * (b + 1) + 1), gi(36 * (b + 2) + (0 if b < 5 else 12)) - 3)
    over = sum(max(0, -g.free()) for g in gaps)
    print('ffn: modelled overflow cycles', over, file=sys.stderr)
    p += flatten(gaps)
    p += stamp('loopend') + [bump]
    p += [waitlds(), barrier(), salu('s_mul_i32', sT0, sW, 24576), valu('v_add_u32', V(2), sT0, vL16),
          salu('s_xor_b32', sT1, sW, 1), salu('s_mul_i32', sT1, sT1, 24576), valu('v_add_u32', V(3), sT1, vL16)]
    for nt in range(12):
        for k in range(2): p.append(dsw('ds_write_b128', V(2), ACC(nt, 2 + k), (nt * 2 + k) * 1024))
    p += [waitlds(), barrier()]
    for nt in range(12):
        for k in range(2): p.append(dsr('ds_read_b128', V(16 + (nt * 2 + k) * 4, 4), V(3), (nt * 2 + k) * 1024))
    for nt in range(12):
        t = V(128 + 8 * (nt & 1), 8); o = V(160 + 4 * nt, 4)
        for r in range(8): p.append(valu('v_accvgpr_read_b32', t[r], A(nt * 16 + r)))
        for r in range(8): p.append(valu('v_add_f32', t[r], t[r], V(16 + nt * 8 + r)))
        for r in range(4): p.append(valu('v_cvt_pk_bf16_f32', o[r], t[2 * r], t[2 * r + 1]))
        if nt % 4 == 0: p.append(salu('s_add_u32', sT3, sPFB, nt * 1024))
        p.append(bst(o, vL16, SWS, sT3, off=(nt % 4) * 1024))
    if DBG: p += [waitvm0()] + stamp('end') + stamp('rt1', True) + stamp_dump()
    p += [raw('s_endpgm')]
    return p

def attn():
    p = [label('L_attn')]
    L = V(0); sHG = sKG
    vL16, vTR, vD, vXR, vFO, vFV, vFD, vFS = V(1), V(2, 2), V(4, 5), V(9, 2), V(11), V(12), V(13), V(14)
    xe, xo = V(240), V(241)
    T = V(242, 14); t0, t1, t2 = T[0], T[1], T[2]
    KV = lambda nt, rt: V(16 + (nt * 2 + rt) * 4, 4)
    QA = lambda nt, rt: V(160 + (nt * 2 + rt) * 4, 4)
    GA = lambda rt: V(232 + 4 * rt, 4)
    X = lambda rt, ks: A((ks * 2 + rt) * 4, 4)
    NW = 8; AH = 6
    WF = [A(144 + 4 * i, 4) for i in range(NW)]
    GW = lambda ks: A(176 + 4 * ks, 4)
    SLOT = lambda u: 18432 * (u % 6)
    XOFF = 110592; EX = 73728; ONES = 159744
    sM = [None, S(4, 2), S(6, 2), S(30, 2)]
    sIMG, sQ, sI, sD, sKVP, sPAB = sOWN, sP1, sP2, sK0, sK1, sK2
    x_dma_setup(p, xe, xo, t0, t1)
    p += [salu('s_lshl_b32', sT2, sW, 12)]
    def xdma(c):
        o = []
        for k in range(4):
            o.append(([salu('s_add_u32', M0, sT2, XOFF + (c % 3) * 16384 + k * 1024), salu('s_mov_b32', sSO, (k >> 1) * 16 * 1152 + c * 128)],
                      dma(xo if k & 1 else xe, SX, sSO, grp=f'X{c}', flags=NT)))
        return o
    flat = lambda it: [i for pre, d in it for i in pre + [d]]
    p += flat(xdma(0))
    srd(p, SW1, P_WQKV, 576 * 3456); srd(p, SW2, P_WO, 576 * 1152); srd(p, SB, P_GW, 1152)
    def dma_offsets(pitch, b0, b1):
        o = [salu('s_and_b32', sT0, sW, 1), salu('s_lshl_b32', sT0, sT0, 8)]
        for i in range(5):
            o += [valu('v_add_u32', t0, sT0, L), valu('v_add_u32', t0, 64 * i, t0) if i else valu('v_mov_b32', t0, t0),
                  valu('v_mul_u32_u24', t1, 3641, t0), valu('v_lshrrev_b32', t1, 16, t1),
                  valu('v_mul_u32_u24', t2, 18, t1), valu('v_sub_u32', t0, t0, t2),
                  valu('v_lshrrev_b32', t2, 1, t1), valu('v_xor_b32', t2, t2, t1), valu('v_and_b32', t2, 1 << b0, t2),
                  valu('v_mul_u32_u24', t2, 3, t2), valu('v_xor_b32', t1, t1, t2),
                  valu('v_mul_u32_u24', t1, pitch, t1), valu('v_lshl_add_u32', vD[i], t0, 4, t1)]
            if 0 < i < 4: o.append(valu('v_subrev_u32', vD[i], 1024 * i, vD[i]))
        return o
    p += dma_offsets(3456, 2, 3)
    p += [salu('s_lshr_b32', sIMG, sW, 1), salu('s_mul_i32', sLW, sIMG, 9216), salu('s_lshl_b32', sT0, sT0, 4), salu('s_add_u32', sLW, sLW, sT0),
          salu('s_mul_i32', sT1, sHG, 288),
          salu('s_mul_i32', sSA, sIMG, 1152), salu('s_add_u32', sSA, sSA, sT1), salu('s_add_u32', sSA, sSA, 1152),
          salu('s_mul_i32', sPFB, sIMG, 32 * 3456), salu('s_add_u32', sPFB, sPFB, sT1)]
    sKVB, sQB, sWO0, sWO1 = sSA, sPFB, sSA, sPFB
    def wdma(u):
        o = []
        for i in range(5):
            pre = []
            if i in (0, 4): pre.append(salu('s_add_u32', M0, sLW, SLOT(u) + 1024 * i))
            if i == 0:
                if u < 18: pre.append(salu('s_add_u32', sSO, sKVB, u * 32 * 3456))
                elif u < 27: pre.append(salu('s_add_u32', sSO, sQB, (u - 18) * 64 * 3456))
                else:
                    cg, ks = divmod(2 * (u - 27), 5)
                    pre.append(salu('s_add_u32', sSO, sWO1 if ks == 4 else sWO0, (ks * 32 * 1152 + cg * 288) & 0xffffffff))
            o.append((pre, dma(vD[i], SW1 if u < 27 else SW2, sSO, off=1024 * (i & 3), grp=f'W{u}', flags=NT)))
        return o
    p += flat(wdma(0)) + flat(wdma(1)) + flat(xdma(1)) + flat(wdma(2)) + flat(wdma(3)) + flat(xdma(2)) + flat(wdma(4))
    p += [salu('s_lshl_b32', sEP, sHG, 7), salu('s_add_u32', sEP, sEP, EP_KV), sld(sTAG, P_WS, sEP),
          valu('v_lshlrev_b32', vL16, 4, L),
          valu('v_bfe_u32', t0, L, 2, 3), valu('v_lshrrev_b32', t1, 5, L), valu('v_lshl_add_u32', t0, t1, 4, t0),
          valu('v_mul_u32_u24', t0, 288, t0), valu('v_and_b32', t1, 3, L), valu('v_lshl_add_u32', vTR[0], t1, 3, t0),
          valu('v_add_u32', vTR[1], 55296, vTR[0]),
          valu('v_and_b32', t0, 15, L), valu('v_lshlrev_b32', t0, 7, t0), valu('v_bfe_u32', t1, L, 1, 3), valu('v_lshrrev_b32', t2, 4, L),
          valu('v_xor_b32', t1, t1, t2), valu('v_lshl_add_u32', t0, t1, 4, t0), salu('s_add_u32', sT0, sT2, XOFF),
          valu('v_add_u32', vXR[0], sT0, t0), valu('v_xor_b32', vXR[1], 64, vXR[0]),
          valu('v_mov_b32', T[4], 0x3f803f80), valu('v_mov_b32', T[5], 0x3f803f80), valu('v_mov_b32', T[6], 0x3f803f80), valu('v_mov_b32', T[7], 0x3f803f80),
          valu('v_add_u32', t0, sT2, vL16), valu('v_lshrrev_b32', t0, 2, t0), valu('v_and_b32', t0, 0xc00, t0), valu('v_add_u32', t0, t0, vL16),
          valu('v_add_u32', t0, ONES, t0), dsw('ds_write_b128', t0, T.sub(4, 4)),
          salu('s_mov_b64', sM[1], 0xffff), salu('s_mov_b32', sM[2][0], -1), salu('s_mov_b32', sM[2][1], 0),
          salu('s_mov_b32', sM[3][0], -1), salu('s_mov_b32', sM[3][1], 0xffff),
          waitlds(), salu('s_mul_i32', sTAG, sTAG, 1664525), salu('s_add_u32', sTAG, sTAG, 1013904223), valu('v_mov_b32', vFD, sTAG)]
    def xreads(c): return [dsr('ds_read_b128', X(rt, 2 * c + k), vXR[k], (c % 3) * 16384 + rt * 2048) for k in range(2) for rt in range(2)]
    def xregs(c): return [X(rt, 2 * c + k) for k in range(2) for rt in range(2)]
    NU = 37; NF = NU * 18
    def finfo(n):
        u, i = divmod(n, 18); img, nt = divmod(i, 9)
        return u, i, img, nt
    def half_only(n):
        u, i, img, nt = finfo(n)
        return u >= 27 and (2 * (u - 27) + img) % 5 == 4
    def frag_reads(n):
        u, i, img, nt = finfo(n); f = WF[n % NW]; win, rem = divmod(SLOT(u), 55296)
        return [dsr('ds_read_b64_tr_b16', f.sub(2 * k, 2), vTR[win], rem + 9216 * img + 32 * nt + 2304 * k) for k in range(1 if half_only(n) else 2)]
    PQ = lambda rt, s_: V(16 + (s_ * 2 + rt) * 4, 4)
    OB = lambda rt, s_: V(160 + (s_ * 2 + rt) * 4, 4)
    WA = lambda cg, nt, rt: V(16 + (cg & 1) * 72 + (nt * 2 + rt) * 4, 4)
    fg = []
    for n in range(NF):
        u, i, img, nt = finfo(n); f = WF[n % NW]
        if u < 18: g = [Gap(mfma(16, KV(i, rt), X(rt, u), f, 0 if u == 0 else KV(i, rt))) for rt in range(2)]
        elif u < 27:
            ks = 2 * (u - 18) + img
            g = [Gap(mfma(16, QA(nt, rt), f, X(rt, ks), 0 if ks == 0 else QA(nt, rt))) for rt in range(2)]
        else:
            cg, ks = divmod(2 * (u - 27) + img, 5)
            g = [Gap(mfma(16, WA(cg, nt, rt), f, OB(rt, ks), 0 if ks == 0 else WA(cg, nt, rt))) for rt in range(2)]
        if n + AH < NF: g[0].fixed += frag_reads(n + AH)
        fg.append(g)
    def put(items, positions):
        for (pre, d), n in zip(items, positions):
            fg[n][1].fixed.insert(0, d)
            for k, s_ in enumerate(pre): fg[n][0 if k == 0 or len(pre) == 1 else 1].shadow.append(s_)
    SP = 18 - AH - 1
    extra = {}; after = {}
    for u in range(0, NU - 5):
        if u + 5 in (22, 23): continue
        put(wdma(u + 5), [18 * u + SP + 1 + k for k in range(5)])
    for c in range(1, 9):
        n0 = 18 * (2 * c - 1)
        fg[n0 + 1][1].shadow.append(waitgrp(f'X{c}'))
        for k, r in enumerate(xreads(c)): fg[n0 + 2 + k][1].fixed.append(r)
    for c in range(3, 9):
        n0 = 18 * (2 * (c - 3))
        fg[n0 + 1][1].shadow.append(waitreg(*xregs(c - 3)))
        put(xdma(c), [n0 + 2 + 2 * k for k in range(4)])
    gl = [([valu('v_and_b32', T[10], 0x30, L)] if ks == 0 else [], bld(GW(ks), T[10], SB, off=64 * ks)) for ks in range(18)]
    put(gl, [18 * (12 + k // 6 * 2) + 1 + k % 6 for k in range(18)])

    def phi(regs, tt):
        o = []; n = len(regs)
        for s_ in range(n + 2):
            if s_ < n: o.append(valu('v_mul_f32', tt[s_ % 4], sL2E, regs[s_]))
            if 0 <= s_ - 1 < n: o += [valu('v_exp_f32_e64', tt[(s_ - 1) % 4], tt[(s_ - 1) % 4], mods='clamp'), valu('v_max_f32', regs[s_ - 1], sT3, regs[s_ - 1])]
            if 0 <= s_ - 2 < n: o.append(valu('v_add_f32', regs[s_ - 2], regs[s_ - 2], tt[(s_ - 2) % 4]))
        return o
    EPS = 0x358637bd
    kv = [comment('kv stage')] + stamp('kv0') + [salu('s_mov_b32', sT3, EPS), barrier(),
          salu('s_lshl_b32', sT0, sW, 10), salu('s_add_u32', sT0, sT0, EX), valu('v_add_u32', T[8], sT0, vL16), valu('v_add_u32', T[9], 36864, T[8])]
    def pack(nt):
        f = V(16 + nt * 8, 4); a = V(16 + nt * 8, 8)
        return [valu('v_cvt_pk_bf16_f32', f[k], a[2 * k], a[2 * k + 1]) for k in range(4)] + \
               [dsw('ds_write_b128', T[8 + nt // 9], f, (nt % 9) * 4096)]
    for nt in range(9, 18): kv += pack(nt)
    for nt in range(9): kv += phi([V(16 + nt * 8 + r) for r in range(8)], T) + pack(nt)
    kv += [salu('s_lshl_b32', sT0, sW, 13), salu('s_add_u32', sT0, sT0, EX), valu('v_add_u32', T[8], sT0, vL16),
           valu('v_add_u32', T[9], EX + 8 * 4096, vL16),
           salu('s_lshl_b32', sT0, sW, 12), salu('s_add_u32', sT0, sT0, EX + 16 * 4096), salu('s_cmp_ge_u32', sW, 2), salu('s_cselect_b32', sT0, ONES, sT0),
           valu('v_add_u32', T[11], sT0, vL16),
           salu('s_lshl_b32', sKVP, sHG, 4), salu('s_add_u32', sT0, sKVP, sR), salu('s_mul_i32', sKVP, sKVP, 36864), salu('s_add_u32', sKVP, sKVP, WS_KVP),
           salu('s_lshl_b32', sT1, sT0, 7), salu('s_mul_i32', sT0, sT0, 36864), salu('s_add_u32', sT0, sT0, WS_KVP),
           salu('s_lshl_b32', sD, sW, 2), salu('s_add_u32', sT1, sT1, sD), salu('s_add_u32', sT1, sT1, FL_KV1), valu('v_mov_b32', vFS, sT1),
           waitlds(), barrier()]
    KF = lambda a, c: V(16 + (a * 4 + c) * 4, 4)
    VF = lambda b, c: V(64 + (b * 4 + c) * 4, 4)
    KD = lambda k: V(160 + 4 * k, 4)
    for c in range(4):
        kv += [dsr('ds_read_b128', KF(0, c), T[8], c * 1024), dsr('ds_read_b128', KF(1, c), T[8], 4096 + c * 1024), dsr('ds_read_b128', KF(2, c), T[9], c * 1024)]
        kv += [dsr('ds_read_b128', VF(b, c), T[8], (8 + b) * 4096 + c * 1024) for b in range(4)] + [dsr('ds_read_b128', VF(4, c), T[11], c * 1024)]
    for c in range(4):
        for a in range(2):
            for d in range(4): kv.append(mfma(16, KD(4 * a + d), KF(a, c), T.sub(4, 4) if d == 3 else VF(a + d, c), 0 if c == 0 else KD(4 * a + d)))
        kv.append(mfma(16, KD(8), KF(2, c), VF(4, c), 0 if c == 0 else KD(8)))
    kv += [barrier()] + flat(wdma(22)) + flat(wdma(23))
    kv += [salu('s_lshl_b32', sT1, sW, 13), salu('s_add_u32', sT1, sT1, sT0), salu('s_add_u32', sD, sT1, 4096),
           salu('s_lshr_b32', sI, sW, 1), salu('s_xor_b32', sI, sI, sW), salu('s_lshl_b32', sI, sI, 10), salu('s_add_u32', sI, sI, sT0), salu('s_add_u32', sI, sI, 32768)]
    for k in range(8): kv.append(bst(KD(k), vL16, SWS, sT1 if k < 4 else sD, off=(k & 3) * 1024, flags='sc1', grp='kvp'))
    kv.append(bst(KD(8), vL16, SWS, sI, flags='sc1', grp='kvp'))
    kv += [valu('v_lshrrev_b32', t0, 2, L), valu('v_lshlrev_b32', t0, 7, t0), valu('v_and_b32', t1, 3, L), valu('v_lshl_add_u32', t0, t1, 2, t0),
           salu('s_lshl_b32', sT0, sHG, 11), salu('s_add_u32', sT0, sT0, FL_KV1), valu('v_add_u32', vFO, sT0, t0),
           salu('s_lshl_b32', sQ, sW, 4), salu('s_add_u32', sQ, sQ, sR),
           salu('s_cmp_eq_u32', sQ, 34), salu('s_cselect_b32', sT0, 19, sQ), salu('s_min_u32', sT0, sT0, 35),
           salu('s_lshr_b32', sI, sT0, 2), salu('s_and_b32', sD, sT0, 3), salu('s_lshl_b32', sT0, sT0, 10), salu('s_add_u32', sKVP, sKVP, sT0)] + stamp('kv1')
    RP = lambda k: V(16 + 4 * k, 4)
    extra[19] = (['kvp'], []); after[19] = [bst(vFD, vFS, SWS, flags='sc1')]
    after[20] = [bld(vFV, vFO, SWS, flags='sc1')]
    extra[21] = ([], [vFV])
    ld = [poll_check(vFV, vFO, vFD, 0, t0)]
    for k in range(16): ld += [salu('s_add_u32', sT0, sKVP, k * 36864), bld(RP(k), vL16, SWS, sT0, flags='sc1')]
    after[21] = ld
    red = []
    for st_ in (8, 4, 2, 1):
        for k in range(st_):
            red += [valu('v_add_f32', RP(k)[r], RP(k)[r], RP(k + st_)[r]) for r in range(4)]
    red += [salu('s_add_u32', sT0, sI, sD), salu('s_lshl_b32', sT0, sT0, 4), salu('s_sub_u32', sT0, sT0, 16),
            valu('v_and_b32', t0, 15, L), valu('v_add_u32', t0, sT0, t0), valu('v_mul_u32_u24', t0, 57, t0), valu('v_lshrrev_b32', t0, 10, t0),
            salu('s_cmp_gt_u32', sQ, 19), salu('s_cselect_b32', sT0, 4, 0), valu('v_and_b32', t1, 3, L), valu('v_add_u32', t1, sT0, t1),
            salu('s_cmp_eq_u32', sD, 3), salu('s_cselect_b64', VCC, -1, 0), valu('v_cndmask_b32', t0, t0, t1, VCC),
            salu('s_lshl_b32', sT0, sI, 4), valu('v_lshrrev_b32', t1, 4, L), valu('v_lshl_add_u32', t1, t1, 2, sT0)]
    for r in range(4):
        red += [valu('v_add_u32', t2, r, t1), valu('v_mul_u32_u24', t2, 57, t2), valu('v_lshrrev_b32', t2, 10, t2),
                valu('v_cmp_eq_u32', VCC, t2, t0), valu('v_cndmask_b32', RP(0)[r], 0, RP(0)[r], VCC)]
    red += [valu('v_cvt_pk_bf16_f32', RP(0)[0], RP(0)[0], RP(0)[1]), valu('v_cvt_pk_bf16_f32', RP(0)[1], RP(0)[2], RP(0)[3]),
            salu('s_lshl_b32', sT0, sHG, 6), salu('s_add_u32', sT1, sT0, sQ), salu('s_lshl_b32', sKVP, sT0, 9), salu('s_add_u32', sKVP, sKVP, WS_KVF),
            salu('s_lshl_b32', sI, sT1, 9), salu('s_add_u32', sI, sI, WS_KVF), valu('v_lshlrev_b32', T[8], 3, L),
            bst(RP(0).sub(0, 2), T[8], SWS, sI, flags='sc1', grp='kvf'),
            salu('s_lshl_b32', sT1, sT1, 2), salu('s_add_u32', sT1, sT1, FL_KV2), valu('v_mov_b32', vFS, sT1),
            salu('s_lshl_b32', sT0, sT0, 2), salu('s_add_u32', sT0, sT0, FL_KV2), valu('v_lshl_add_u32', vFO, L, 2, sT0)]
    extra[23] = ([], [RP(k) for k in range(16)]); after[23] = red
    extra[25] = (['kvf'], []); after[25] = [bst(vFD, vFS, SWS, flags='sc1')]
    after[22] = dma_offsets(1152, 3, 4) + [salu('s_mul_i32', sT1, sHG, 144 * 1152), salu('s_mul_i32', sWO0, sIMG, 32 * 1152), salu('s_add_u32', sWO0, sWO0, sT1),
                salu('s_mul_i32', sWO1, sIMG, (288 - 128 * 1152) & 0xffffffff), salu('s_add_u32', sWO1, sWO1, sT1)]

    NFG = lambda k: V(56 + 4 * k, 4)
    o = [comment('o stage')] + stamp('o0') + [bld(vFV, vFO, SWS, flags='sc1')]
    for ks in range(18):
        for rt in range(2): o.append(mfma(16, GA(rt), GW(ks), X(rt, ks), 0 if ks == 0 else GA(rt)))
    frs = []
    for j in range(9):
        for s_ in range(5):
            ids = [4 * i + (j - i + 1) if abs(j - i) <= 1 and i < 9 else None for i in (2 * s_, 2 * s_ + 1)]
            if any(x is not None for x in ids): frs.append(('n', j, s_, ids))
    frs += [('d', 0, 0, [3, 7]), ('d', 0, 1, [11, 15]), ('d', 0, 2, [19, None]), ('d', 1, 2, [34, 23]), ('d', 1, 3, [27, 31]), ('d', 1, 4, [35, None])]
    assert len(frs) == 23
    for k, fr in enumerate(frs):
        for h, idn in enumerate(fr[3]):
            if idn is None: o += [valu('v_mov_b32', NFG(k)[2 * h], 0), valu('v_mov_b32', NFG(k)[2 * h + 1], 0)]
    o += [poll_check(vFV, vFO, vFD, 0, t0)]
    lds_ = sorted((idn, k, h) for k, fr in enumerate(frs) for h, idn in enumerate(fr[3]) if idn is not None)
    cur = None
    for idn, k, h in lds_:
        if idn // 8 != cur:
            cur = idn // 8; o.append(salu('s_add_u32', sT0, sKVP, cur * 4096))
        o.append(bld(NFG(k).sub(2 * h, 2), T[8], SWS, sT0, off=(idn % 8) * 512, flags='sc1'))
    bump = raw(f"""s_or_b32 {sT0}, {sR}, {sW}
s_cmp_lg_u32 {sT0}, 0
s_cbranch_scc1 L_nobump2
v_mov_b32 {t0}, {sEP}
buffer_store_dword {vFD}, {t0}, {SWS}, 0 offen sc1
s_waitcnt vmcnt(0)
L_nobump2:""", rd=(sR, sW, sEP, vFD, SWS), wr=(sT0, t0))
    o += phi([V(160 + r) for r in range(72)], T)
    for rt in range(2):
        for nt in range(9):
            d = PQ(rt, nt // 2).sub(2 * (nt & 1), 2)
            o += [valu('v_cvt_pk_bf16_f32', d[k], QA(nt, rt)[2 * k], QA(nt, rt)[2 * k + 1]) for k in range(2)]
        o += [valu('v_mov_b32', PQ(rt, 4)[2], 0), valu('v_mov_b32', PQ(rt, 4)[3], 0)]
    for rt in range(2):
        G = GA(rt)
        o += [valu('v_mul_f32', G[1], sL2E, G[0]), valu('v_exp_f32_e64', G[2], Neg(G[1])), valu('v_exp_f32', G[3], G[1]),
              valu('v_add_f32', G[2], 1.0, G[2]), valu('v_add_f32', G[3], 1.0, G[3]), valu('v_rcp_f32', G[2], G[2]), valu('v_rcp_f32', G[3], G[3])]
    o += [salu('s_lshl_b32', sT0, sR, 2), salu('s_add_u32', sT0, sT0, sHG), salu('s_lshl_b32', sT0, sT0, 2), salu('s_add_u32', sT0, sT0, sW),
          salu('s_mul_i32', sPAB, sT0, 36864), salu('s_add_u32', sPAB, sPAB, WS_PA),
          salu('s_lshl_b32', sT0, sT0, 7), salu('s_add_u32', sT0, sT0, WS_G1), valu('v_and_b32', t0, 15, L), valu('v_lshlrev_b32', t0, 2, t0),
          bst(GA(0)[3], t0, SWS, sT0, flags=PFLAGS), bst(GA(1)[3], t0, SWS, sT0, off=64, flags=PFLAGS)]
    DEN = lambda h, rt: A(176 + (h * 2 + rt) * 4, 4)
    OA = QA
    seen = set()
    for k, fr in [x for x in enumerate(frs) if x[1][0] == 'd'] + [x for x in enumerate(frs) if x[1][0] == 'n']:
        for rt in range(2):
            d = DEN(fr[1], rt) if fr[0] == 'd' else OA(fr[1], rt)
            o.append(mfma(16, d, NFG(k), PQ(rt, fr[2]), d if (fr[0], fr[1]) in seen else 0))
        seen.add((fr[0], fr[1]))
    SC = lambda h, rt: V(16 + rt * 8 + h)
    for rt in range(2):
        for h in range(8): o.append(valu('v_accvgpr_read_b32', SC(h, rt), DEN(h // 4, rt)[h % 4]))
    for rt in range(2):
        for h in range(8): o.append(valu('v_add_f32', SC(h, rt), sT3, SC(h, rt)))
    for rt in range(2):
        for h in range(8): o.append(valu('v_rcp_f32', SC(h, rt), SC(h, rt)))
    for rt in range(2):
        for h in range(8): o.append(valu('v_mul_f32', SC(h, rt), GA(rt)[2], SC(h, rt)))
    tk = 0
    OT = lambda rt, s_: V(40 + (s_ * 2 + rt) * 4, 4)
    for j in range(9):
        for rt in range(2):
            for r in range(4):
                G = -(-(2 * j - r) // 4)
                if G <= 0: sc = SC(j, rt)
                elif G >= 4: sc = SC(j - 1, rt)
                else:
                    sc = T[tk % 4]; tk += 1
                    o.append(valu('v_cndmask_b32', sc, SC(j, rt), SC(j - 1, rt), sM[G]))
                o.append(valu('v_mul_f32', OA(j, rt)[r], sc, OA(j, rt)[r]))
            d = OT(rt, j // 2).sub(2 * (j & 1), 2)
            o += [valu('v_cvt_pk_bf16_f32', d[k], OA(j, rt)[2 * k], OA(j, rt)[2 * k + 1]) for k in range(2)]
    for rt in range(2):
        for s_ in range(5):
            for k in range(4): o.append(valu('v_mov_b32', OB(rt, s_)[k], 0 if s_ == 4 and k >= 2 else OT(rt, s_)[k]))
    o += stamp('o1')

    for n in range(NF - 1):
        u, i, img, nt = finfo(n)
        regs = [WF[(n + 1) % NW]]
        if i == 17 and u < 17 and u % 2 == 1: regs += xregs((u + 1) // 2)
        if i == SP and u < NU - 1:
            eg, er = extra.get(u, ([], []))
            fg[n][1].shadow = stamp(f'a{u}', fine=True) + [wait([f'W{u+1}'] + eg, regs + er), barrier()] + stamp(f'b{u}', fine=True) + fg[n][1].shadow
            fg[n][1].fixed = after.get(u, []) + fg[n][1].fixed
        else: fg[n][1].shadow.insert(0, wait([], regs))
    gaps = [g for gl_ in fg for g in gl_]
    def out_ops(cg):
        ops = []
        for nt in range(9):
            d = V(200 + 4 * (nt % 8), 4); a = V(16 + (cg & 1) * 72 + nt * 8, 8); g = 9 * cg + nt
            ops += [valu('v_cvt_pk_bf16_f32', d[k], a[2 * k], a[2 * k + 1]) for k in range(4)]
            if nt == 0 or g % 4 == 0: ops.append(salu('s_add_u32', sT1, sPAB, (g // 4) * 4096))
            ops.append(bst(d, vL16, SWS, sT1, off=(g % 4) * 1024, flags=PFLAGS, grp='pa'))
        return ops
    for cg in range(3):
        n0 = 27 * 18 + 45 * (cg + 1)
        weave(gaps, out_ops(cg), 2 * n0 + 4, 2 * (n0 + 45) - 4)
    p += [waitgrp('X0')] + xreads(0) + [waitgrp('W0'), barrier()] + stamp('X0')
    for n in range(AH): p += frag_reads(n)
    p += flatten(gaps[:2 * 18 * 18]) + kv + flatten(gaps[2 * 18 * 18:2 * 27 * 18]) + o + flatten(gaps[2 * 27 * 18:])
    p += stamp('loopend') + out_ops(3) + [bump]
    if DBG: p += [waitvm0()] + stamp('end') + stamp('rt1', True) + stamp_dump()
    p += [raw('s_endpgm')]
    return p

def reduce_kernel():
    L = V(0)
    p = [raw('s_cmp_ge_u32 s2, 576\ns_cbranch_scc1 L_end2')]
    p += [sld(S(24, 4), S(0, 2), 64), sld(S(28, 2), S(0, 2), 80),
          valu('v_lshrrev_b32', V(1), 6, V(0)), valu('v_and_b32', V(0), 63, V(0)), valu('v_readfirstlane_b32', sW, V(1)),
          salu('s_and_b32', sR, S(2), 15), salu('s_lshr_b32', sT0, S(2), 4),
          salu('s_mul_i32', sJ, sT0, 43), salu('s_lshr_b32', sJ, sJ, 9),
          salu('s_mul_i32', sT1, sJ, 12), salu('s_sub_u32', sT1, sT0, sT1),
          waitlds()]
    srd(p, SWS, P_WS, WS_SIZE); srd(p, SOUT, P_OUT, 2048 * 1152)
    p += [valu('v_lshlrev_b32', V(1), 4, L),
          salu('s_mul_i32', sT2, sR, 12), salu('s_add_u32', sT2, sT2, sJ), salu('s_lshl_b32', sT2, sT2, 2), salu('s_add_u32', sT2, sT2, sW),
          salu('s_mul_i32', sT2, sT2, 12288), salu('s_lshl_b32', sT1, sT1, 10), salu('s_add_u32', sT2, sT2, sT1), salu('s_add_u32', sT2, sT2, WS_PF),
          salu('s_lshl_b32', sT3, sR, 4), salu('s_add_u32', sT3, sT3, sW), salu('s_lshl_b32', sSO, sT3, 7), salu('s_add_u32', sSO, sSO, WS_G1),
          salu('s_mul_i32', sT3, sT3, 36864), salu('s_lshl_b32', sT1, sT0, 10), salu('s_add_u32', sT3, sT3, sT1), salu('s_add_u32', sT3, sT3, WS_PA)]
    for k in range(4):
        p += [bld(V(8 + 4 * k, 4), V(1), SWS, sT2), salu('s_add_u32', sT2, sT2, 12 * 12288)]
    for k in range(4):
        p += [bld(V(24 + 4 * k, 4), V(1), SWS, sT3), salu('s_add_u32', sT3, sT3, 4 * 36864)]
    p += [valu('v_and_b32', V(2), 15, L), valu('v_lshlrev_b32', V(3), 2, V(2)), bld(V(4), V(3), SWS, sSO), bld(V(5), V(3), SWS, sSO, off=64),
          salu('s_lshl_b32', sT1, sR, 7), salu('s_lshl_b32', sT2, sW, 5), salu('s_add_u32', sT1, sT1, sT2), valu('v_add_u32', V(2), sT1, V(2)),
          valu('v_mul_u32_u24', V(2), 1152, V(2)), valu('v_lshrrev_b32', V(3), 4, L), valu('v_lshl_add_u32', V(2), V(3), 3, V(2)),
          salu('s_lshl_b32', sT0, sT0, 5), salu('s_add_u32', sT1, sT0, 16 * 1152)]
    for half, base in ((0, 8), (1, 24)):
        for k in range(4):
            for d in range(4):
                src = V(base + 4 * k + d); lo = V(40 + 8 * half + 2 * d); hi = V(41 + 8 * half + 2 * d)
                if k == 0: p += [valu('v_lshlrev_b32', lo, 16, src), valu('v_and_b32', hi, 0xffff0000, src)]
                else: p += [valu('v_lshlrev_b32', V(6), 16, src), valu('v_and_b32', V(7), 0xffff0000, src), valu('v_add_f32', lo, lo, V(6)), valu('v_add_f32', hi, hi, V(7))]
    for e in range(8): p.append(valu('v_fmac_f32', V(48 + e), V(4 + e // 4), V(40 + e)))
    for d in range(4): p.append(valu('v_cvt_pk_bf16_f32', V(8 + d), V(48 + 2 * d), V(49 + 2 * d)))
    p += [bst(V(8, 2), V(2), SOUT, sT0), bst(V(10, 2), V(2), SOUT, sT1), label('L_end2'), raw('s_endpgm')]
    return p

def build(path):
    st = {}
    cp = common_prologue()
    lines = finalize(resolve_stamps(cp + ffn(), 'ffn'), st); print('ffn', st, file=sys.stderr)
    lines += finalize(resolve_stamps([i for i in cp if i.kind == 'stamp'] + attn(), 'attn')[6 if DBG else 0:], st); print('attn', st, file=sys.stderr)
    hdr = [l for l in open('cdna_kernels/' + NAME + '.s.ref').read().split('\n') if l.startswith(';') and '@launch' not in l and 'Override' not in l and 'grid=ceil' not in l]
    k1 = 'main_kernel'; k2 = 'reduce_kernel'
    lines2 = finalize(reduce_kernel(), st)
    txt = '\n'.join(hdr) + f'\n; @launch kernel={k1} grid=(256,1,1) block=(256,1,1) lds=163840\n'
    txt += f'; @launch kernel={k2} grid=(576,1,1) block=(256,1,1) lds=0\n'
    txt += '.amdgcn_target "amdgcn-amd-amdhsa--gfx950"\n.text\n'
    txt += f'.globl {k1}\n.p2align 8\n.type {k1},@function\n{k1}:\n' + '\n'.join(lines) + '\nL_end:\n    s_endpgm\n'
    txt += f'.globl {k2}\n.p2align 8\n.type {k2},@function\n{k2}:\n' + '\n'.join(lines2) + '\n'
    txt += '.section .rodata,"a"\n'
    for k, nv, ao in ((k1, 512, 256), (k2, 64, 64)):
        txt += f'''.p2align 6
.amdhsa_kernel {k}
  .amdhsa_next_free_vgpr {nv}
  .amdhsa_next_free_sgpr 102
  .amdhsa_accum_offset {ao}
  .amdhsa_group_segment_fixed_size 0
  .amdhsa_kernarg_size 88
  .amdhsa_user_sgpr_count 2
  .amdhsa_user_sgpr_kernarg_segment_ptr 1
  .amdhsa_system_sgpr_workgroup_id_x 1
.end_amdhsa_kernel
'''
    open(path, 'w').write(txt)

if __name__ == '__main__':
    DBG = 'dbg' in sys.argv[2:] or 'fine' in sys.argv[2:]
    FINE = 'fine' in sys.argv[2:]
    build(sys.argv[1] if len(sys.argv) > 1 else 'k.s')
```
